```python
import torch

def _softmax(x, axis=-1):
    return torch.softmax(x, dim=axis)
def _gelu(x):
    return torch.nn.functional.gelu(x, approximate="tanh")
def _silu(x):
    return torch.nn.functional.silu(x)
def _sigmoid(x):
    return torch.sigmoid(x)
def _layernorm(x, axis=-1, eps=1e-5):
    m = x.mean(dim=axis, keepdim=True)
    v = x.var(dim=axis, keepdim=True, unbiased=False)
    return (x - m) / torch.sqrt(v + eps)
def _scatter_add(tgt, idx, src, axis=0):
    return tgt.clone().index_add_(axis, idx, src)
def _segment_sum(src, seg, n):
    out = torch.zeros((n,) + src.shape[1:], dtype=src.dtype)
    return out.index_add_(0, seg, src)
def _pad(x, pw):
    flat = tuple(v for pair in reversed(pw) for v in pair)
    return torch.nn.functional.pad(x, flat)

kernel_name = 'standalone__cheap_equivariant_egnn__graph'

def setup_inputs():

    _w = (lambda a: (lambda t: t.to(torch.bfloat16) if t.is_floating_point() else t)(torch.as_tensor(a)))
    N, deg, D, De = 10000, 16, 256, max(4, 1)
    E = N * deg
    return {
        "h": _w((lambda *s: torch.randn(*s, dtype=torch.bfloat16) * 0.2)(N, D)),
        "pos": _w((lambda *s: torch.randn(*s, dtype=torch.bfloat16) * 0.4)(N, 3)),
        "e_attr": _w((lambda *s: torch.randn(*s, dtype=torch.bfloat16) * 0.4)(E, De)),
        "src": _w((lambda lo, hi, *s: torch.randint(lo, hi, s))(0, N, E).to(torch.int64)),
        "dst": _w((lambda lo, hi, *s: torch.randint(lo, hi, s))(0, N, E).to(torch.int64)),
        "w_e": _w(0.1 * (lambda *s: torch.randn(*s, dtype=torch.bfloat16) * 0.4)(2 * D + 1 + De, D)),
        "w_x": _w(0.1 * (lambda *s: torch.randn(*s, dtype=torch.bfloat16) * 0.2)(D, 1)),
        "w_h": _w(0.1 * (lambda *s: torch.randn(*s, dtype=torch.bfloat16) * 0.2)(2 * D, D)),
    }

def reference(h, pos, e_attr, src, dst, w_e, w_x, w_h):
    N, D = h.shape[0], h.shape[1]
    diff = pos[dst] - pos[src]
    dist2 = torch.sum(diff * diff, axis=-1, keepdims=True)
    e_in = torch.concatenate([h[dst], h[src], dist2, e_attr], axis=-1)
    m_ij = _silu(e_in @ w_e)
    coord_scale = m_ij @ w_x
    pos_new = pos + _segment_sum(diff * coord_scale, dst, N)
    m_i = _segment_sum(m_ij, dst, N)
    h_new = h + _silu(torch.concatenate([h, m_i], axis=-1) @ w_h)
    return h_new, pos_new
```

```python
class Tok:
    __slots__ = ("cls", "idx")
    def __init__(self, cls, idx):
        self.cls, self.idx = cls, idx

class Asm:
    def __init__(self):
        self.lines = []
        self.n = {"vm": 0, "lgkm": 0}
        self.done = {"vm": 0, "lgkm": 0}
        self.uid = 0

    def __call__(self, s):
        for ln in s.strip("\n").split("\n"):
            ln = ln.strip()
            if ln:
                self.lines.append("  " + ln)

    def label(self, name):
        self.lines.append(name + ":")

    def comment(self, s):
        self.lines.append("  ; " + s)

    def raw(self, s):
        self.lines.append(s)

    def fresh(self, base):
        self.uid += 1
        return f"{base}_{self.uid}"

    def vm(self, s):
        self(s)
        self.n["vm"] += 1
        return Tok("vm", self.n["vm"])

    def ds(self, s):
        self(s)
        self.n["lgkm"] += 1
        return Tok("lgkm", self.n["lgkm"])

    def wait(self, *toks):
        need = {}
        for t in toks:
            if t is None:
                continue
            if t.idx > self.done[t.cls]:
                need[t.cls] = max(need.get(t.cls, 0), t.idx)
        parts = []
        for cls, name, mx in (("vm", "vmcnt", 63), ("lgkm", "lgkmcnt", 15)):
            if cls in need:
                cnt = min(self.n[cls] - need[cls], mx)
                parts.append(f"{name}({cnt})")
                self.done[cls] = self.n[cls] - cnt
        if parts:
            self("s_waitcnt " + " ".join(parts))

    def wait_all(self, vm=True, lgkm=True):
        parts = []
        if vm:
            parts.append("vmcnt(0)"); self.done["vm"] = self.n["vm"]
        if lgkm:
            parts.append("lgkmcnt(0)"); self.done["lgkm"] = self.n["lgkm"]
        self("s_waitcnt " + " ".join(parts))

    def srd(self, d, lo, off, size):
        if off == 0:
            self(f"s_mov_b32 s{d}, s{lo}\ns_mov_b32 s{d+1}, s{lo+1}")
        else:
            o = off if isinstance(off, str) else hex(off)
            self(f"s_add_u32 s{d}, s{lo}, {o}\ns_addc_u32 s{d+1}, s{lo+1}, 0")
        self(f"s_mov_b32 s{d+2}, {size}\ns_mov_b32 s{d+3}, 0x20000")

    def text(self):
        return "\n".join(self.lines) + "\n"

def vr(b, n=1):
    return f"v{b}" if n == 1 else f"v[{b}:{b+n-1}]"
def ar(b, n=1):
    return f"a{b}" if n == 1 else f"a[{b}:{b+n-1}]"
def sr(b, n=1):
    return f"s{b}" if n == 1 else f"s[{b}:{b+n-1}]"
```

```python
from asmlib import *
from layout import *

TMAX = 28
L_RING = 0
L_HT = 32768
L_DESC = 0
L_XS = 65536
L_SRC = L_XS + (TMAX + 1) * 3072
L_CNT = L_SRC + (TMAX + 6) * 128
MAIN_LDS = L_CNT + 64
L_MT = 0
MT_STRIDE = 544
L_PP = 32768
SRC_PAD = 0x7F000000
assert MAIN_LDS <= 163840, MAIN_LDS

S_H, S_WX, S_OUT, S_WS = 4, 6, 8, 10
S_W = 12
S_NODE0 = 13
SRD_BT, SRD_R4, SRD_R8, SRD_PP, SRD_H, SRD_WF, SRD_OUT, SRD_TMP = 16, 20, 24, 28, 32, 36, 40, 44
S_M0 = 48
S_WOFF = 52
S_FM = 53
S_GY, S_G0, S_G1 = 54, 55, 56
S_N, S_NT = 57, 58
S_RET = 60
S_MASK = 62
S_T0, S_T1, S_T2, S_T3 = 70, 71, 72, 73
S_BASE, S_NWIN = 74, 75
S_SLOW = 76
S_K = 78
S_EX = 80

V_T = [0, 16]
V_E = 32
V_M = 48
V_GA = [56, 64]
V_X = 72
V_S = 76
V_ID = [84, 88]
V_Y = [92, 96]
V_ACC = [100, 116]
V_Z = 132
V_SRCV = 136
V_DA = 140
V_COL = 144
V_AGA = 148
V_AXS, V_ASRC = 152, 153
V_TID, V_LANE = 154, 155
V_MP = 160
V_TMP = 240
def MP(g, b): return V_MP + (g*2 + b)*8
A_WF = 0
A_H1 = 128
A_AP = {(0, 0): 128, (0, 1): 144, (1, 0): 160, (1, 1): 216}
A_YS = 176
A_HR = 216
A_WX = 240
def YS(g, b): return A_YS + (g*2 + b)*4

M32 = "v_mfma_f32_32x32x16_bf16"
M16 = "v_mfma_f32_16x16x32_bf16"

def R_REC(r): return 160 + 10*r
def R_EA(r): return 162 + 10*r
def R_PS(r): return 166 + 10*r
def R_PD(r): return 168 + 10*r
def R_P(r): return 161 + 10*r
NR = 4
V_W1 = 200

def rounds(a, fn, tag):
    for r in range(3):
        fn(r)
    lab = a.fresh(f"L_r3_{tag}")
    a(f"s_cmp_le_u32 s{S_NWIN}, 768\ns_cbranch_scc1 {lab}")
    fn(3)
    a.label(lab)

def setup(a):
    a(f"""
    s_cmp_ge_u32 s2, {NB}
    s_cbranch_scc1 L_main_exit
    s_load_dwordx2 s[{S_H}:{S_H+1}], s[0:1], 0
    s_load_dwordx2 s[{S_WX}:{S_WX+1}], s[0:1], 48
    s_load_dwordx2 s[{S_OUT}:{S_OUT+1}], s[0:1], 64
    s_load_dwordx2 s[{S_WS}:{S_WS+1}], s[0:1], 80
    v_mov_b32 v{V_TID}, v0
    v_and_b32 v{V_LANE}, 63, v0
    v_lshrrev_b32 v1, 6, v0
    s_mul_i32 s{S_NODE0}, s2, {NPB}
    v_readfirstlane_b32 s{S_W}, v1
    s_waitcnt lgkmcnt(0)
    """)
    a(f"s_lshl_b32 s{S_T0}, s2, 8\ns_add_u32 s{S_T0}, s{S_T0}, {WS_OFFS}")
    a.srd(SRD_TMP, S_WS, f"s{S_T0}", G*4)
    a(f"v_lshlrev_b32 v1, 2, v{V_LANE}")
    t_offs = a.vm(f"buffer_load_dword v2, v1, s[{SRD_TMP}:{SRD_TMP+3}], 0 offen")
    a(f"s_mul_i32 s{S_T1}, s2, {NPB*512}")
    a.srd(SRD_H, S_H, f"s{S_T1}", NPB*512)
    a(f"""
    v_lshrrev_b32 v3, 5, v{V_LANE}
    s_lshl_b32 s{S_T0}, s{S_W}, 1
    v_add_u32 v4, s{S_T0}, v3
    v_and_b32 v5, 31, v{V_LANE}
    v_xor_b32 v4, v4, v5
    v_lshlrev_b32 v4, 4, v4
    v_lshl_add_u32 v4, v3, 9, v4
    v_xor_b32 v5, 0x80, v4
    s_lshl_b32 s{S_T0}, s{S_W}, 10
    s_add_u32 s{S_T1}, s{S_T0}, {L_HT}
    """)
    t_h = None
    for u in range(5):
        a(f"s_add_u32 m0, s{S_T1}, {u*4096}")
        a(f"s_add_u32 s{S_T2}, s{S_T0}, {u*4096}")
        t_h = a.vm(f"buffer_load_dwordx4 v{4 + (u & 1)}, s[{SRD_H}:{SRD_H+3}], s{S_T2} offen lds")
    a.srd(SRD_WF, S_WS, WS_W1F, 3*131072)
    a(f"v_lshlrev_b32 v6, 4, v{V_LANE}\ns_lshl_b32 s{S_T3}, s{S_W}, 15")
    t_w1 = {}
    for s in range(16):
        for b in range(2):
            f = b*16 + s
            a(f"s_add_u32 s{S_T2}, s{S_T3}, {(f >> 2)*4096}")
            d = A_WF + (s*2 + b)*4
            t_w1[(s, b)] = a.vm(f"buffer_load_dwordx4 a[{d}:{d+3}], v6, s[{SRD_WF}:{SRD_WF+3}], s{S_T2} offen offset:{(f & 3)*1024}")
    return t_offs, t_h, t_w1

def lds_init2(a):
    a(f"""
    v_mov_b32 v8, 0
    v_mov_b32 v9, 0
    v_mov_b32 v10, 0
    v_mov_b32 v11, 0
    v_lshlrev_b32 v7, 4, v{V_TID}
    v_add_u32 v7, {L_XS}, v7
    v_add_u32 v12, 0xc000, v7
    """)
    total = (TMAX + 1) * 3072
    for k in range(0, total, 4096):
        reg, off = (7, k) if k < 0xc000 else (12, k - 0xc000)
        if k + 4096 <= total:
            a.ds(f"ds_write_b128 v{reg}, v[8:11] offset:{off}")
        else:
            rem = (total - k) // 16
            a(f"v_cmp_gt_u32 vcc, {rem}, v{V_TID}\ns_and_saveexec_b64 s[{S_EX}:{S_EX+1}], vcc")
            a.ds(f"ds_write_b128 v{reg}, v[8:11] offset:{off}")
            a(f"s_mov_b64 exec, s[{S_EX}:{S_EX+1}]")
    nsrc = (TMAX + 6) * 128 // 16
    assert nsrc + 4 <= 256 + 64
    a(f"""
    v_mov_b32 v8, {hex(SRC_PAD)}
    v_mov_b32 v9, v8
    v_mov_b32 v10, v8
    v_mov_b32 v11, v8
    v_lshlrev_b32 v7, 4, v{V_TID}
    v_add_u32 v7, {L_SRC}, v7
    """)
    k = 0
    while k < nsrc:
        cnt = min(256, nsrc - k)
        if cnt < 256:
            a(f"v_cmp_gt_u32 vcc, {cnt}, v{V_TID}\ns_and_saveexec_b64 s[{S_EX}:{S_EX+1}], vcc")
        a.ds(f"ds_write_b128 v7, v[8:11] offset:{k*16}")
        if cnt < 256:
            a(f"s_mov_b64 exec, s[{S_EX}:{S_EX+1}]")
        k += cnt
    a(f"""
    v_mov_b32 v8, 0
    v_lshlrev_b32 v7, 2, v{V_TID}
    v_cmp_gt_u32 vcc, 8, v{V_TID}
    s_and_saveexec_b64 s[{S_EX}:{S_EX+1}], vcc
    """)
    a.ds(f"ds_write_b32 v7, v8 offset:{L_CNT}") if L_CNT < 65536 else None
    if L_CNT >= 65536:
        a(f"v_add_u32 v7, {L_CNT}, v7")
        a.ds(f"ds_write_b32 v7, v8")
    a(f"s_mov_b64 exec, s[{S_EX}:{S_EX+1}]")

def desc_scatter(a, t_offs):
    a.wait(t_offs)
    a(f"""
    v_lshrrev_b32 v8, 16, v2
    v_and_b32 v9, 0xffff, v2
    v_mov_b32 v10, v8
    s_nop 1
    v_add_u32_dpp v10, v10, v10 row_shr:1 row_mask:0xf bank_mask:0xf bound_ctrl:0
    s_nop 1
    v_add_u32_dpp v10, v10, v10 row_shr:2 row_mask:0xf bank_mask:0xf bound_ctrl:0
    s_nop 1
    v_add_u32_dpp v10, v10, v10 row_shr:4 row_mask:0xf bank_mask:0xf bound_ctrl:0
    s_nop 1
    v_add_u32_dpp v10, v10, v10 row_shr:8 row_mask:0xf bank_mask:0xf bound_ctrl:0
    s_nop 1
    v_add_u32_dpp v10, v10, v10 row_bcast:15 row_mask:0xa bank_mask:0xf
    s_nop 1
    v_add_u32_dpp v10, v10, v10 row_bcast:31 row_mask:0xc bank_mask:0xf
    v_mul_u32_u24 v11, {CH}, v{V_LANE}
    v_add_u32 v11, v11, v9
    v_readlane_b32 s{S_N}, v10, 63
    v_sub_u32 v{V_TMP+1}, v10, v8
    v_mov_b32 v{V_TMP}, v8
    v_mov_b32 v{V_TMP+2}, v11
    """)

def desc_window(a, cap_sgpr_or_imm):
    lab, done = a.fresh("L_desc"), a.fresh("L_desc_done")
    a(f"""
    v_subrev_u32 v8, s{S_BASE}, v{V_TMP+1}
    v_sub_u32 v9, 0, v8
    v_max_i32 v9, 0, v9
    v_sub_u32 v10, {cap_sgpr_or_imm}, v8
    v_min_i32 v10, v10, v{V_TMP}
    v_add_u32 v9, s{S_W}, v9
    v_add_u32 v11, v9, v{V_TMP+2}
    v_add_u32 v12, v9, v8
    v_lshlrev_b32 v12, 2, v12
    """)
    a.label(lab)
    a(f"""
    v_cmp_lt_i32 vcc, v9, v10
    s_nop 0
    s_and_b64 exec, exec, vcc
    s_cbranch_scc0 {done}
    ds_write_b32 v12, v11 offset:{L_DESC}
    v_add_u32 v9, 4, v9
    v_add_u32 v11, 4, v11
    v_add_u32 v12, 16, v12
    s_branch {lab}
    """)
    a.label(done)
    a("s_mov_b64 exec, -1")
    a.wait_all(vm=False)

def rec_loads(a):
    a(f"v_lshlrev_b32 v8, 2, v{V_TID}")
    toks = {}
    for r in range(NR):
        toks[r] = a.ds(f"ds_read_b32 v{9+r}, v8 offset:{L_DESC + r*1024}")
    for r in range(NR):
        a(f"s_sub_i32 s{S_T0}, s{S_NWIN}, {256*r}\nv_cmp_gt_i32 s[{S_MASK+2*r}:{S_MASK+2*r+1}], s{S_T0}, v{V_TID}")
    a(f"v_mov_b32 v13, 0x0fffffff")
    a.wait(toks[NR-1])
    out = {}
    def one(r):
        m = f"s[{S_MASK+2*r}:{S_MASK+2*r+1}]"
        a(f"""
        v_cndmask_b32 v{9+r}, v13, v{9+r}, {m}
        v_lshlrev_b32 v14, 2, v{9+r}
        v_lshlrev_b32 v15, 3, v{9+r}
        """)
        a.vm(f"buffer_load_dword v{R_REC(r)}, v14, s[{SRD_R4}:{SRD_R4+3}], 0 offen")
        out[r] = a.vm(f"buffer_load_dwordx2 v[{R_EA(r)}:{R_EA(r)+1}], v15, s[{SRD_R8}:{SRD_R8+3}], 0 offen")
    for r in range(NR):
        one(r)
    return out

def wf_loads(a, which, dst_fn, agpr):
    a(f"v_lshlrev_b32 v{V_TMP+3}, 4, v{V_LANE}\ns_lshl_b32 s{S_T3}, s{S_W}, 15\ns_add_u32 s{S_T3}, s{S_T3}, {which*131072}")
    toks = {}
    for s in range(8):
        for mb in range(4):
            f = mb*8 + s
            a(f"s_add_u32 s{S_T2}, s{S_T3}, {(f >> 2)*4096}")
            d = dst_fn(mb, s)
            reg = f"a[{d}:{d+3}]" if agpr else f"v[{d}:{d+3}]"
            toks[(mb, s)] = a.vm(f"buffer_load_dwordx4 {reg}, v{V_TMP+3}, s[{SRD_WF}:{SRD_WF+3}], s{S_T2} offen offset:{(f & 3)*1024}")
    return toks

def gemm_a(a, t_w1):
    VA = 128
    a(f"""
    v_and_b32 v{V_W1}, 31, v{V_LANE}
    v_lshrrev_b32 v{V_W1+1}, 5, v{V_LANE}
    v_and_b32 v{V_W1+2}, 15, v{V_LANE}
    v_xor_b32 v{V_W1+1}, v{V_W1+1}, v{V_W1+2}
    v_lshlrev_b32 v{V_W1}, 9, v{V_W1}
    v_add_u32 v{V_W1}, {L_HT}, v{V_W1}
    """)
    for k in range(8):
        a(f"v_xor_b32 v{V_W1+2}, {2*k}, v{V_W1+1}\nv_lshl_add_u32 v{VA+k}, v{V_W1+2}, 4, v{V_W1}")
    BUF = [V_W1 + 4, V_W1 + 12]
    def issue(s):
        tok = None
        for mb in range(2):
            d = BUF[s & 1] + 4*mb
            tok = a.ds(f"ds_read_b128 v[{d}:{d+3}], v{VA + (s & 7)} offset:{mb*16384 + (s >> 3)*256}")
        return tok
    tok = issue(0)
    for s in range(16):
        a.wait(tok, t_w1[(s, 1)])
        if s < 15:
            tok = issue(s + 1)
        for b in range(2):
            for mb in range(2):
                d = A_AP[(mb, b)]; x = BUF[s & 1] + 4*mb; w = A_WF + (s*2 + b)*4
                c = "0" if s == 0 else f"a[{d}:{d+15}]"
                a(f"{M32} a[{d}:{d+15}], v[{x}:{x+3}], a[{w}:{w+3}], {c}")

def rank_phase(a, t_rec):
    a(f"v_mov_b32 v{V_TMP+4}, 1\nv_mov_b32 v{V_TMP+5}, {L_CNT}\ns_lshl_b32 s{S_T1}, s{S_NODE0}, 3")
    toks = {}
    def one(r):
        a.wait(t_rec[r])
        R = R_REC(r)
        a(f"""
        v_bfe_u32 v{V_W1}, v{R}, 3, 3
        v_lshl_add_u32 v{V_W1}, v{V_W1}, 2, v{V_TMP+5}
        v_lshrrev_b32 v{V_W1+1}, 9, v{R}
        v_lshlrev_b32 v{V_W1+1}, 3, v{V_W1+1}
        v_and_b32 v{V_W1+2}, 63, v{R}
        v_lshlrev_b32 v{V_W1+2}, 3, v{V_W1+2}
        s_mov_b64 exec, s[{S_MASK+2*r}:{S_MASK+2*r+1}]
        """)
        a.ds(f"ds_add_rtn_u32 v{R_P(r)}, v{V_W1}, v{V_TMP+4}")
        a("s_mov_b64 exec, -1")
        a.vm(f"buffer_load_dwordx2 v[{R_PS(r)}:{R_PS(r)+1}], v{V_W1+1}, s[{SRD_PP}:{SRD_PP+3}], 0 offen")
        toks[r] = a.vm(f"buffer_load_dwordx2 v[{R_PD(r)}:{R_PD(r)+1}], v{V_W1+2}, s[{SRD_PP}:{SRD_PP+3}], s{S_T1} offen")
    for r in range(NR):
        one(r)
    a.wait_all(vm=False)
    a("s_barrier")
    return toks

def group_bases(a):
    B = V_W1
    a(f"""
    v_min_u32 v{B}, 7, v{V_LANE}
    v_lshlrev_b32 v{B}, 2, v{B}
    v_add_u32 v{B}, {L_CNT}, v{B}
    """)
    t = a.ds(f"ds_read_b32 v{B+1}, v{B}")
    a.wait(t)
    a(f"""
    v_add_u32 v{B+1}, 31, v{B+1}
    v_lshrrev_b32 v{B+1}, 5, v{B+1}
    v_max_u32 v{B+1}, 1, v{B+1}
    v_cmp_gt_u32 vcc, 5, v{V_LANE}
    s_nop 1
    v_cndmask_b32 v{B+1}, 0, v{B+1}, vcc
    v_mov_b32 v{B+2}, v{B+1}
    s_nop 1
    v_add_u32_dpp v{B+2}, v{B+2}, v{B+2} row_shr:1 row_mask:0xf bank_mask:0xf bound_ctrl:0
    s_nop 1
    v_add_u32_dpp v{B+2}, v{B+2}, v{B+2} row_shr:2 row_mask:0xf bank_mask:0xf bound_ctrl:0
    s_nop 1
    v_add_u32_dpp v{B+2}, v{B+2}, v{B+2} row_shr:4 row_mask:0xf bank_mask:0xf bound_ctrl:0
    v_sub_u32 v{B+3}, v{B+2}, v{B+1}
    v_lshlrev_b32 v{B+3}, 5, v{B+3}
    s_mov_b32 s{S_FM}, 0
    """)
    for g in range(5):
        a(f"""
        v_readlane_b32 s{S_T0}, v{B+2}, {g}
        s_nop 0
        s_min_u32 s{S_T1}, s{S_T0}, 30
        s_lshl_b32 s{S_T1}, 1, s{S_T1}
        s_or_b32 s{S_FM}, s{S_FM}, s{S_T1}
        """)
    a(f"s_mov_b32 s{S_NT}, s{S_T0}")

def positions(a):
    B = V_W1
    toks = {}
    for r in range(NR):
        a(f"v_bfe_u32 v{B+4+r}, v{R_REC(r)}, 3, 3\nv_lshlrev_b32 v{B+4+r}, 2, v{B+4+r}")
        toks[r] = a.ds(f"ds_bpermute_b32 v{B+8+r}, v{B+4+r}, v{B+3}")
    for r in range(NR):
        a.wait(toks[r])
        P = R_P(r)
        a(f"""
        v_add_u32 v{P}, v{P}, v{B+8+r}
        v_lshrrev_b32 v{B+12}, 5, v{P}
        v_and_b32 v{B+13}, 7, v{P}
        v_lshlrev_b32 v{B+13}, 4, v{B+13}
        v_lshl_add_u32 v{B+12}, v{B+12}, 7, v{B+13}
        v_bfe_u32 v{B+13}, v{P}, 3, 2
        v_lshl_add_u32 v{B+12}, v{B+13}, 2, v{B+12}
        v_add_u32 v{B+12}, {L_SRC}, v{B+12}
        v_and_b32 v{B+13}, 0xfffffe00, v{R_REC(r)}
        s_mov_b64 exec, s[{S_MASK+2*r}:{S_MASK+2*r+1}]
        """)
        a.ds(f"ds_write_b32 v{B+12}, v{B+13}")
        a("s_mov_b64 exec, -1")
    a.wait_all(vm=False)
    a("s_barrier")

def dma_consts(a):
    a(f"""
    v_and_b32 v{V_TMP+6}, 7, v{V_LANE}
    v_lshrrev_b32 v{V_TMP+7}, 4, v{V_LANE}
    v_xor_b32 v{V_TMP+6}, v{V_TMP+6}, v{V_TMP+7}
    v_lshlrev_b32 v{V_TMP+6}, 4, v{V_TMP+6}
    v_xor_b32 v{V_TMP+7}, 64, v{V_TMP+6}
    v_add_u32 v{V_COL}, 3072, v{V_TMP+6}
    v_add_u32 v{V_COL+1}, 2048, v{V_TMP+7}
    v_add_u32 v{V_COL+2}, 1024, v{V_TMP+6}
    v_mov_b32 v{V_COL+3}, v{V_TMP+7}
    v_lshrrev_b32 v{V_ASRC}, 3, v{V_LANE}
    v_lshlrev_b32 v{V_ASRC}, 4, v{V_ASRC}
    v_add_u32 v{V_ASRC}, {L_SRC}, v{V_ASRC}
    s_lshl_b32 s{S_WOFF}, s{S_W}, 7
    s_lshl_b32 s{S_T0}, s{S_W}, 12
    """)
    for u in range(4):
        a(f"s_add_u32 s{S_M0+u}, s{S_T0}, {u*16384}")

def dma_tile(a, tile, first=False):
    t = a.ds(f"ds_read_b128 v[{V_SRCV}:{V_SRCV+3}], v{V_ASRC} offset:{tile*128}")
    a.wait(t)
    for i in range(4):
        a(f"v_add_u32 v{V_DA+i}, v{V_SRCV+i}, v{V_COL+i}")
    a(f"s_mov_b32 m0, s{S_M0 + (tile & 3)}\ns_nop 0")
    tok = None
    for i in range(4):
        tok = a.vm(f"buffer_load_dwordx4 v{V_DA+i}, s[{SRD_BT}:{SRD_BT+3}], s{S_WOFF} offen offset:{i*1024} lds")
    return tok

def y_prep(a, t_wx):
    B = V_W1
    a.wait(t_wx)
    a(f"s_mov_b32 s{S_K}, {hex(NEG_LOG2E)}\ns_mov_b32 s{S_K+1}, s{S_K}")
    for b in range(2):
        wxa, wxb = B + 2*b, B + 2*b + 1
        for g in range(5):
            src = A_AP[(0, b)] + 4*g if g < 4 else A_AP[(1, b)]
            T = B + 4 + 8*(g & 1)
            for i in range(4):
                a(f"v_accvgpr_read_b32 v{T+i}, a{src+i}")
            a(f"""
            v_pk_mul_f32 v[{T}:{T+1}], v[{T}:{T+1}], s[{S_K}:{S_K+1}]
            v_pk_mul_f32 v[{T+2}:{T+3}], v[{T+2}:{T+3}], s[{S_K}:{S_K+1}]
            v_mov_b32 v{T+4}, v{wxa}
            v_mov_b32 v{T+5}, v{wxb}
            v_cvt_pk_bf16_f32 v{T+6}, v{T}, v{T+1}
            v_cvt_pk_bf16_f32 v{T+7}, v{T+2}, v{T+3}
            s_nop 1
            v_permlane32_swap_b32 v{T+4}, v{T+6}
            v_permlane32_swap_b32 v{T+5}, v{T+7}
            s_nop 0
            """)
            y = YS(g, b)
            for i, src_r in enumerate((T+4, T+5, T+6, T+7)):
                a(f"v_accvgpr_write_b32 a{y+i}, v{src_r}")

def WH1(mb, s): return (s*4 + mb)*4
def WH2(mb, s): return A_WF + (s*4 + mb)*4

def h16_addr(a, dst, base):
    a(f"""
    v_and_b32 v{dst+4}, 15, v{V_LANE}
    v_lshrrev_b32 v{dst+5}, 4, v{V_LANE}
    v_xor_b32 v{dst+5}, v{dst+5}, v{dst+4}
    v_lshlrev_b32 v{dst+4}, 9, v{dst+4}
    v_add_u32 v{dst+4}, {base}, v{dst+4}
    """)
    for k in range(4):
        a(f"v_xor_b32 v{dst+6}, {4*k}, v{dst+5}\nv_lshl_add_u32 v{dst+k}, v{dst+6}, 4, v{dst+4}")

def gemm_h1(a, t_wh1):
    VA = 128
    h16_addr(a, VA, L_HT)
    BUF = [V_W1, V_W1 + 12]
    def issue(s):
        tok = None
        for nb in range(3):
            d = BUF[s & 1] + 4*nb
            tok = a.ds(f"ds_read_b128 v[{d}:{d+3}], v{VA + (s & 3)} offset:{nb*8192 + (s >> 2)*256}")
        return tok
    tok = issue(0)
    for s in range(8):
        a.wait(tok, t_wh1[(3, s)])
        if s < 7:
            tok = issue(s + 1)
        for nb in range(3):
            for mb in range(4):
                d = A_H1 + (nb*4 + mb)*4; x = BUF[s & 1] + 4*nb; w = WH1(mb, s)
                c = "0" if s == 0 else f"a[{d}:{d+3}]"
                a(f"{M16} a[{d}:{d+3}], v[{w}:{w+3}], v[{x}:{x+3}], {c}")
    a(f"""
    v_and_b32 v{V_W1+24}, 15, v{V_LANE}
    v_lshrrev_b32 v{V_W1+25}, 5, v{V_LANE}
    s_lshl_b32 s{S_T0}, s{S_W}, 3
    v_add_u32 v{V_W1+25}, s{S_T0}, v{V_W1+25}
    v_bfe_u32 v{V_W1+26}, v{V_LANE}, 4, 1
    v_lshlrev_b32 v{V_W1+26}, 3, v{V_W1+26}
    v_lshl_add_u32 v{V_W1+26}, v{V_W1+24}, 9, v{V_W1+26}
    v_add_u32 v{V_W1+26}, {L_HT}, v{V_W1+26}
    """)
    tok = None
    for mb in range(4):
        a(f"""
        v_add_u32 v{V_W1+27}, {2*mb}, v{V_W1+25}
        v_xor_b32 v{V_W1+27}, v{V_W1+27}, v{V_W1+24}
        v_lshl_add_u32 v{V_W1+28+mb}, v{V_W1+27}, 4, v{V_W1+26}
        """)
        for nb in range(3):
            d = A_HR + (nb*4 + mb)*2
            tok = a.ds(f"ds_read_b64 a[{d}:{d+1}], v{V_W1+28+mb} offset:{nb*8192}")
    a.wait(tok)

def build_xs(a, t_pos):
    B = V_W1
    a(f"v_mov_b32 v{B+15}, 0x3f80\ns_mov_b32 s{S_T1}, 0xffff0000")
    for r in range(NR):
        a.wait(t_pos[r])
        R, P, EA, PS, PD = R_REC(r), R_P(r), R_EA(r), R_PS(r), R_PD(r)
        a(f"""
        v_lshlrev_b32 v{B}, 16, v{PS}
        v_and_b32 v{B+1}, s{S_T1}, v{PS}
        v_lshlrev_b32 v{B+2}, 16, v{PS+1}
        v_lshlrev_b32 v{B+3}, 16, v{PD}
        v_and_b32 v{B+4}, s{S_T1}, v{PD}
        v_lshlrev_b32 v{B+5}, 16, v{PD+1}
        v_sub_f32 v{B}, v{B+3}, v{B}
        v_sub_f32 v{B+1}, v{B+4}, v{B+1}
        v_sub_f32 v{B+2}, v{B+5}, v{B+2}
        v_cvt_pk_bf16_f32 v{PS}, v{B}, v{B+1}
        v_cvt_pk_bf16_f32 v{PS+1}, v{B+2}, v{B+2}
        v_lshrrev_b32 v{B+6}, 5, v{P}
        v_mul_u32_u24 v{B+6}, 3072, v{B+6}
        v_add_u32 v{B+6}, {L_XS}, v{B+6}
        v_lshlrev_b32 v{B}, 16, v{PS}
        v_and_b32 v{B+1}, s{S_T1}, v{PS}
        v_lshlrev_b32 v{B+2}, 16, v{PS+1}
        v_mul_f32 v{B+2}, v{B+2}, v{B+2}
        v_fmac_f32 v{B+2}, v{B+1}, v{B+1}
        v_fmac_f32 v{B+2}, v{B}, v{B}
        v_and_b32 v{B+7}, 31, v{P}
        v_and_b32 v{B+8}, 7, v{R}
        v_cvt_pk_bf16_f32 v{EA+2}, v{B+2}, v{B+2}
        v_mov_b32 v{EA+3}, v{EA}
        v_lshl_add_u32 v{B+9}, v{B+7}, 4, v{B+6}
        v_lshl_add_u32 v{B+10}, v{B+8}, 1, v{B+9}
        v_bfe_u32 v{B+11}, v{B+7}, 4, 1
        v_lshl_add_u32 v{B+12}, v{B+11}, 10, v{B+6}
        v_bfe_u32 v{B+11}, v{B+7}, 2, 1
        v_lshl_add_u32 v{B+12}, v{B+11}, 9, v{B+12}
        v_and_b32 v{B+11}, 8, v{B+7}
        v_add_u32 v{B+12}, v{B+11}, v{B+12}
        v_and_b32 v{B+11}, 3, v{B+7}
        v_lshl_add_u32 v{B+12}, v{B+11}, 1, v{B+12}
        v_lshl_add_u32 v{B+12}, v{B+8}, 6, v{B+12}
        s_mov_b64 exec, s[{S_MASK+2*r}:{S_MASK+2*r+1}]
        """)
        a.ds(f"ds_write_b128 v{B+9}, v[{EA}:{EA+3}]")
        a.ds(f"ds_write_b16 v{B+10}, v{B+15} offset:512")
        a.ds(f"ds_write_b16 v{B+12}, v{B+15} offset:1024")
        a.ds(f"ds_write_b16 v{B+12}, v{PS} offset:1040")
        a.ds(f"ds_write_b16_d16_hi v{B+12}, v{PS} offset:1056")
        a.ds(f"ds_write_b16 v{B+12}, v{PS+1} offset:1072")
        a("s_mov_b64 exec, -1")
    a.wait_all(vm=False)

def loop_consts(a):
    L = V_LANE; B = V_TMP + 6
    a(f"""
    v_and_b32 v{B}, 31, v{L}
    v_lshrrev_b32 v{B+1}, 5, v{L}
    v_lshlrev_b32 v{B+2}, 3, v{B+1}
    v_sub_u32 v{B+2}, v{B}, v{B+2}
    v_mov_b32 v{B+3}, 0x3f80
    v_mov_b32 v{B+4}, 0x3f800000
    """)
    for w in range(2):
        for r in range(4):
            a(f"""
            v_mov_b32 v{V_ID[w]+r}, 0
            v_cmp_eq_u32 vcc, {16*w + 2*r}, v{B+2}
            s_nop 1
            v_cndmask_b32 v{V_ID[w]+r}, v{V_ID[w]+r}, v{B+3}, vcc
            v_cmp_eq_u32 vcc, {16*w + 2*r + 1}, v{B+2}
            s_nop 1
            v_cndmask_b32 v{V_ID[w]+r}, v{V_ID[w]+r}, v{B+4}, vcc
            """)
    a(f"""
    v_bfe_u32 v{B+3}, v{B}, 1, 3
    v_xor_b32 v{B+3}, v{B+3}, v{B+1}
    v_lshlrev_b32 v{B+4}, 7, v{B}
    s_lshl_b32 s{S_T0}, s{S_W}, 12
    v_add_u32 v{B+4}, s{S_T0}, v{B+4}
    """)
    for b in range(2):
        for w in range(2):
            a(f"v_xor_b32 v{B+5}, {4*b + 2*w}, v{B+3}\nv_lshl_add_u32 v{V_AGA + 2*b + w}, v{B+5}, 4, v{B+4}")
    a(f"v_lshlrev_b32 v{V_AXS}, 4, v{L}\nv_add_u32 v{V_AXS}, {L_XS}, v{V_AXS}")
    for i in range(4):
        a(f"v_mov_b32 v{V_Z+i}, 0")
    for i in range(8):
        a(f"v_mov_b32 v{V_M+i}, 0\nv_mov_b32 v{V_S+i}, 0")

def load_y(a, g):
    for b in range(2):
        for i in range(4):
            a(f"v_accvgpr_read_b32 v{V_Y[b]+i}, a{YS(g, b)+i}")

def zero_acc(a, b):
    d = V_ACC[b]
    a(f"{M32} v[{d}:{d+15}], v[{V_Z}:{V_Z+3}], v[{V_Z}:{V_Z+3}], 0")

def ga_read(a, b, w, slot):
    d = V_GA[b] + 4*w
    return a.ds(f"ds_read_b128 v[{d}:{d+3}], v{V_AGA + 2*b + w} offset:{slot*16384}")

def pipeline_fill(a):
    a("s_waitcnt vmcnt(12)")
    ga_read(a, 0, 0, 0); ga_read(a, 0, 1, 0)
    a.ds(f"ds_read_b128 v[{V_X}:{V_X+3}], v{V_AXS}")
    a.wait_all(vm=False)
    T = V_T[0]
    a(f"{M32} v[{T}:{T+15}], v[{V_GA[0]}:{V_GA[0]+3}], v[{V_ID[0]}:{V_ID[0]+3}], 0")
    a(f"{M32} v[{T}:{T+15}], v[{V_GA[0]+4}:{V_GA[0]+7}], v[{V_ID[1]}:{V_ID[1]+3}], v[{T}:{T+15}]")
    a(f"{M32} v[{T}:{T+15}], v[{V_X}:{V_X+3}], v[{V_Y[0]}:{V_Y[0]+3}], v[{T}:{T+15}]")
    a.ds(f"ds_read_b128 v[{V_SRCV}:{V_SRCV+3}], v{V_ASRC} offset:{4*128}")
    ga_read(a, 1, 0, 0); ga_read(a, 1, 1, 0)
    a("s_nop 15")

def exps(b, lo, hi):
    return [f"v_exp_f32 v{V_E+i}, v{V_T[b]+i}" for i in range(lo, hi)]

def w2(a, b):
    for i in range(8):
        a(f"v_pk_add_f32 v[{V_E+2*i}:{V_E+2*i+1}], v[{V_E+2*i}:{V_E+2*i+1}], 1.0")
    for i in range(16):
        a(f"v_rcp_f32 v{V_E+i}, v{V_E+i}")
    for i in range(8):
        a(f"v_pk_mul_f32 v[{V_E+2*i}:{V_E+2*i+1}], v[{V_E+2*i}:{V_E+2*i+1}], v[{V_T[b]+2*i}:{V_T[b]+2*i+1}]")
    for i in range(8):
        a(f"v_cvt_pk_bf16_f32 v{V_M+i}, v{V_E+2*i}, v{V_E+2*i+1}")

def s2m(b, q):
    d = V_ACC[b]
    return f"{M32} v[{d}:{d+15}], v[{V_M+4*q}:{V_M+4*q+3}], v[{V_S+4*q}:{V_S+4*q+3}], v[{d}:{d+15}]"
def s1m(b, k):
    T = V_T[b]
    if k == 0: return f"{M32} v[{T}:{T+15}], v[{V_GA[b]}:{V_GA[b]+3}], v[{V_ID[0]}:{V_ID[0]+3}], 0"
    if k == 1: return f"{M32} v[{T}:{T+15}], v[{V_GA[b]+4}:{V_GA[b]+7}], v[{V_ID[1]}:{V_ID[1]+3}], v[{T}:{T+15}]"
    return f"{M32} v[{T}:{T+15}], v[{V_X}:{V_X+3}], v[{V_Y[b]}:{V_Y[b]+3}], v[{T}:{T+15}]"

def edge_loop(a):
    stubs = []
    a.label("L_loop")
    for u in range(4):
        nx = (u + 1) & 3
        a(s2m(1, 0)); a("s_waitcnt vmcnt(8)")
        a("\n".join(exps(0, 0, 3)))
        a(s2m(1, 1)); a("s_waitcnt lgkmcnt(0)")
        a(f"ds_read_b128 v[{V_GA[0]}:{V_GA[0]+3}], v{V_AGA} offset:{nx*16384}")
        a("\n".join(exps(0, 3, 6)))
        a(s1m(1, 0))
        a(f"ds_read_b128 v[{V_GA[0]+4}:{V_GA[0]+7}], v{V_AGA+1} offset:{nx*16384}")
        a("\n".join(exps(0, 6, 9)))
        a(s1m(1, 1)); a(f"s_and_b32 s{S_T0}, s{S_FM}, 3")
        a(f"ds_read_b128 v[{V_S}:{V_S+3}], v{V_AXS} offset:{u*3072 + 1024}")
        a("\n".join(exps(0, 9, 12)))
        a(s1m(1, 2))
        a(f"ds_read_b128 v[{V_S+4}:{V_S+7}], v{V_AXS} offset:{u*3072 + 2048}")
        a(f"ds_read_b128 v[{V_X}:{V_X+3}], v{V_AXS} offset:{(u+1)*3072}")
        a("\n".join(exps(0, 12, 16)))
        w2(a, 0)
        a(f"s_cbranch_scc1 L_stubA{u}")
        a.label(f"L_retA{u}")
        stubs.append((f"L_stubA{u}", "L_handlerA", f"L_retA{u}"))
        a("s_waitcnt lgkmcnt(0)")
        a(s2m(0, 0)); a(f"s_mov_b32 m0, s{S_M0+u}")
        a("\n".join(exps(1, 0, 3)))
        for i in range(4):
            a(f"v_add_u32 v{V_DA+i}, v{V_SRCV+i}, v{V_COL+i}")
        a(s2m(0, 1))
        a(f"ds_read_b128 v[{V_SRCV}:{V_SRCV+3}], v{V_ASRC} offset:{(u+5)*128}")
        a("\n".join(exps(1, 3, 6)))
        a(s1m(0, 0))
        a(f"ds_read_b128 v[{V_GA[1]}:{V_GA[1]+3}], v{V_AGA+2} offset:{nx*16384}")
        a("\n".join(exps(1, 6, 9)))
        a(s1m(0, 1)); a(f"s_bitcmp1_b32 s{S_FM}, 1")
        a(f"ds_read_b128 v[{V_GA[1]+4}:{V_GA[1]+7}], v{V_AGA+3} offset:{nx*16384}")
        a("\n".join(exps(1, 9, 12)))
        a(s1m(0, 2))
        for i in range(4):
            a(f"buffer_load_dwordx4 v{V_DA+i}, s[{SRD_BT}:{SRD_BT+3}], s{S_WOFF} offen offset:{i*1024} lds")
        a("\n".join(exps(1, 12, 16)))
        w2(a, 1)
        a(f"s_cbranch_scc1 L_stubB{u}")
        a.label(f"L_retB{u}")
        stubs.append((f"L_stubB{u}", "L_handlerB", f"L_retB{u}"))
        a(f"s_lshr_b32 s{S_FM}, s{S_FM}, 1\ns_cmp_eq_u32 s{S_FM}, 1\ns_cbranch_scc1 L_loop_done")
    a(f"v_add_u32 v{V_AXS}, {4*3072}, v{V_AXS}\nv_add_u32 v{V_ASRC}, {4*128}, v{V_ASRC}\ns_branch L_loop")
    for st, h, ret in stubs:
        a.label(st)
        a(f"s_call_b64 s[{S_RET}:{S_RET+1}], {h}\ns_branch {ret}")

def flush_code(a, g, b):
    for p in range(8):
        a(f"v_cvt_pk_bf16_f32 v{MP(g, b)+p}, v{V_ACC[b]+2*p}, v{V_ACC[b]+2*p+1}")

def handlers(a):
    ret = f"s_setpc_b64 s[{S_RET}:{S_RET+1}]"
    a.label("L_handlerA")
    a(f"s_bitcmp1_b32 s{S_FM}, 1\ns_cbranch_scc0 L_hA_flush")
    a(f"s_add_u32 s{S_GY}, s{S_GY}, 1")
    for g in range(1, 5):
        a(f"s_cmp_eq_u32 s{S_GY}, {g}\ns_cbranch_scc1 L_hA_y{g}")
    a("s_branch L_hA_flush")
    for g in range(1, 5):
        a.label(f"L_hA_y{g}")
        load_y(a, g)
        if g < 4:
            a("s_branch L_hA_flush")
    a.label("L_hA_flush")
    a(f"s_bitcmp1_b32 s{S_FM}, 0\ns_cbranch_scc0 L_hA_ret")
    for g in range(3):
        a(f"s_cmp_eq_u32 s{S_G1}, {g}\ns_cbranch_scc1 L_hA_f{g}")
    for g in (3, 0, 1, 2):
        if g != 3:
            a.label(f"L_hA_f{g}")
        flush_code(a, g, 1)
        if g != 2:
            a("s_branch L_hA_fz")
    a.label("L_hA_fz")
    zero_acc(a, 1)
    a(f"s_add_u32 s{S_G1}, s{S_G1}, 1")
    a.label("L_hA_ret")
    a(ret)
    a.label("L_handlerB")
    for g in range(4):
        a(f"s_cmp_eq_u32 s{S_G0}, {g}\ns_cbranch_scc1 L_hB_f{g}")
    for g in (4, 0, 1, 2, 3):
        if g != 4:
            a.label(f"L_hB_f{g}")
        flush_code(a, g, 0)
        if g != 3:
            a("s_branch L_hB_fz")
    a.label("L_hB_fz")
    zero_acc(a, 0)
    a(f"s_add_u32 s{S_G0}, s{S_G0}, 1")
    a(ret)

def tail(a):
    a.label("L_loop_done")
    a.n = {"vm": 0, "lgkm": 0}; a.done = {"vm": 0, "lgkm": 0}
    a(s2m(1, 0)); a(s2m(1, 1))
    a("s_waitcnt vmcnt(0) lgkmcnt(0)")
    a("s_nop 15\ns_nop 7")
    flush_code(a, 4, 1)
    a("s_barrier")
    L = V_LANE; B = 0
    a(f"""
    v_bfe_u32 v{B}, v{L}, 2, 3
    v_mul_u32_u24 v{B}, {MT_STRIDE}, v{B}
    v_lshrrev_b32 v{B+1}, 5, v{L}
    v_lshl_add_u32 v{B}, v{B+1}, 3, v{B}
    s_lshl_b32 s{S_T0}, s{S_W}, 7
    v_add_u32 v{B}, s{S_T0}, v{B}
    v_and_b32 v{B+1}, 3, v{L}
    v_cmp_eq_u32 vcc, 0, v{B+1}
    s_and_saveexec_b64 s[{S_EX}:{S_EX+1}], vcc
    """)
    for g in range(5):
        for b in range(2):
            for t in range(4):
                off = L_MT + g*8*MT_STRIDE + b*64 + t*16
                a.ds(f"ds_write_b64 v{B}, v[{MP(g, b)+2*t}:{MP(g, b)+2*t+1}] offset:{off}")
    a(f"s_mov_b64 exec, s[{S_EX}:{S_EX+1}]")
    VA = 4
    a(f"""
    v_and_b32 v{VA}, 15, v{L}
    v_mul_u32_u24 v{VA}, {MT_STRIDE}, v{VA}
    v_lshrrev_b32 v{VA+1}, 4, v{L}
    v_lshl_add_u32 v{VA}, v{VA+1}, 4, v{VA}
    """)
    WXV = 100
    for i in range(16):
        a(f"v_accvgpr_read_b32 v{WXV+i}, a{A_WX+i}")
    a.wait_all(vm=False)
    a("s_barrier")
    ACC2 = 8
    BUF = [56, 68]
    PD = 120
    for g in range(5):
        a(f"v_mov_b32 v{PD+g}, 0")
    dots = []
    for g in range(5):
        for b in range(2):
            for p in range(8):
                dots.append(f"v_dot2c_f32_bf16 v{PD+g}, v{MP(g, b)+p}, v{WXV + b*8 + p}")
    def issue(s):
        tok = None
        for nb in range(3):
            d = BUF[s & 1] + 4*nb
            tok = a.ds(f"ds_read_b128 v[{d}:{d+3}], v{VA} offset:{L_MT + nb*16*MT_STRIDE + s*64}")
        return tok
    tok = issue(0)
    di = 0
    for s in range(8):
        a.wait(tok)
        if s < 7:
            tok = issue(s + 1)
        for nb in range(3):
            for mb in range(4):
                d = ACC2 + (nb*4 + mb)*4; x = BUF[s & 1] + 4*nb; w = WH2(mb, s)
                c = "0" if s == 0 else f"v[{d}:{d+3}]"
                a(f"{M16} v[{d}:{d+3}], a[{w}:{w+3}], v[{x}:{x+3}], {c}")
                if di < len(dots):
                    a(dots[di]); di += 1
    while di < len(dots):
        a(dots[di]); di += 1
    a(f"""
    v_lshlrev_b32 v{VA}, 2, v{L}
    s_mul_i32 s{S_T0}, s{S_W}, {5*256}
    v_add_u32 v{VA}, s{S_T0}, v{VA}
    s_nop 2
    """)
    for g in range(5):
        a.ds(f"ds_write_b32 v{VA}, v{PD+g} offset:{L_PP + g*256}")
    H1V = 160; HRV = 208
    for i in range(48):
        a(f"v_accvgpr_read_b32 v{H1V+i}, a{A_H1+i}")
    for i in range(24):
        a(f"v_accvgpr_read_b32 v{HRV+i}, a{A_HR+i}")
    a.wait_all(vm=False)
    a("s_barrier")
    a(f"s_cmp_ge_u32 s{S_W}, 2\ns_cbranch_scc1 L_pos_done")
    a.srd(SRD_TMP, S_WS, WS_POSP, N*8)
    a(f"s_mul_i32 s{S_T0}, s2, {NPB*6}\ns_add_u32 s{S_T0}, s{S_T0}, {N*512}")
    a.srd(SRD_R4, S_OUT, f"s{S_T0}", NPB*6)
    P = 80
    a(f"""
    v_mul_u32_u24 v{P}, 21846, v{V_TID}
    v_lshrrev_b32 v{P}, 16, v{P}
    v_mul_u32_u24 v{P+1}, 3, v{P}
    v_sub_u32 v{P+1}, v{V_TID}, v{P+1}
    v_add_u32 v{P+2}, s{S_NODE0}, v{P}
    v_lshlrev_b32 v{P+2}, 3, v{P+2}
    v_lshl_add_u32 v{P+2}, v{P+1}, 1, v{P+2}
    """)
    tp = a.vm(f"buffer_load_ushort v{P+3}, v{P+2}, s[{SRD_TMP}:{SRD_TMP+3}], 0 offen")
    a(f"""
    v_lshrrev_b32 v{P+4}, 3, v{P}
    v_min_u32 v{P+4}, 4, v{P+4}
    v_and_b32 v{P+5}, 7, v{P}
    v_lshlrev_b32 v{P+5}, 2, v{P+5}
    v_add3_u32 v{P+5}, v{P+5}, v{P+1}, 1
    v_lshlrev_b32 v{P+5}, 2, v{P+5}
    v_lshl_add_u32 v{P+5}, v{P+4}, 8, v{P+5}
    v_add_u32 v{P+5}, {L_PP}, v{P+5}
    """)
    tk = None
    for w in range(4):
        for h in range(2):
            tk = a.ds(f"ds_read_b32 v{P+6+2*w+h}, v{P+5} offset:{w*5*256 + h*128}")
    a.wait(tk)
    for k in range(1, 8):
        a(f"v_add_f32 v{P+6}, v{P+6}, v{P+6+k}")
    a.wait(tp)
    a(f"""
    v_lshlrev_b32 v{P+3}, 16, v{P+3}
    s_mov_b32 s{S_T0}, {hex(NEG_LN2)}
    v_fmac_f32 v{P+3}, s{S_T0}, v{P+6}
    v_cvt_pk_bf16_f32 v{P+3}, v{P+3}, v{P+3}
    v_lshlrev_b32 v{P+4}, 1, v{V_TID}
    """)
    a.vm(f"buffer_store_short v{P+3}, v{P+4}, s[{SRD_R4}:{SRD_R4+3}], 0 offen")
    a.label("L_pos_done")
    a(f"s_mul_i32 s{S_T0}, s2, {NPB*512}")
    a.srd(SRD_OUT, S_OUT, f"s{S_T0}", NPB*512)
    a(f"""
    s_mov_b32 s{S_K}, {hex(NEG_LOG2E)}
    s_mov_b32 s{S_K+1}, s{S_K}
    s_mov_b32 s{S_K+2}, {hex(NEG_LN2)}
    s_mov_b32 s{S_K+3}, s{S_K+2}
    s_mov_b32 s{S_T1}, 0xffff0000
    v_and_b32 v{VA}, 15, v{L}
    v_lshrrev_b32 v{VA+1}, 4, v{L}
    v_and_b32 v{VA+2}, 1, v{VA+1}
    v_lshlrev_b32 v{VA+2}, 5, v{VA+2}
    v_lshrrev_b32 v{VA+1}, 1, v{VA+1}
    v_lshl_add_u32 v{VA+2}, v{VA+1}, 4, v{VA+2}
    v_lshl_add_u32 v{VA}, v{VA}, 9, v{VA+2}
    s_lshl_b32 s{S_T0}, s{S_W}, 7
    v_add_u32 v{VA}, s{S_T0}, v{VA}
    """)
    EE = 56
    for nb in range(3):
        for mp in range(2):
            O = 96 + 4*((nb*2 + mp) & 1)
            for mi in range(2):
                mb = 2*mp + mi
                t = ACC2 + (nb*4 + mb)*4; h1 = H1V + (nb*4 + mb)*4; hr = HRV + (nb*4 + mb)*2
                e = EE + 4*mi; hh = EE + 8 + 4*mi
                a(f"""
                v_pk_fma_f32 v[{t}:{t+1}], v[{h1}:{h1+1}], s[{S_K}:{S_K+1}], v[{t}:{t+1}]
                v_pk_fma_f32 v[{t+2}:{t+3}], v[{h1+2}:{h1+3}], s[{S_K}:{S_K+1}], v[{t+2}:{t+3}]
                v_lshlrev_b32 v{hh}, 16, v{hr}
                v_and_b32 v{hh+1}, s{S_T1}, v{hr}
                v_exp_f32 v{e}, v{t}
                v_exp_f32 v{e+1}, v{t+1}
                v_exp_f32 v{e+2}, v{t+2}
                v_exp_f32 v{e+3}, v{t+3}
                v_lshlrev_b32 v{hh+2}, 16, v{hr+1}
                v_and_b32 v{hh+3}, s{S_T1}, v{hr+1}
                v_pk_add_f32 v[{e}:{e+1}], v[{e}:{e+1}], 1.0
                v_pk_add_f32 v[{e+2}:{e+3}], v[{e+2}:{e+3}], 1.0
                v_rcp_f32 v{e}, v{e}
                v_rcp_f32 v{e+1}, v{e+1}
                v_rcp_f32 v{e+2}, v{e+2}
                v_rcp_f32 v{e+3}, v{e+3}
                v_pk_mul_f32 v[{t}:{t+1}], v[{t}:{t+1}], s[{S_K+2}:{S_K+3}]
                v_pk_mul_f32 v[{t+2}:{t+3}], v[{t+2}:{t+3}], s[{S_K+2}:{S_K+3}]
                v_pk_fma_f32 v[{e}:{e+1}], v[{e}:{e+1}], v[{t}:{t+1}], v[{hh}:{hh+1}]
                v_pk_fma_f32 v[{e+2}:{e+3}], v[{e+2}:{e+3}], v[{t+2}:{t+3}], v[{hh+2}:{hh+3}]
                v_cvt_pk_bf16_f32 v{O+2*mi}, v{e}, v{e+1}
                v_cvt_pk_bf16_f32 v{O+2*mi+1}, v{e+2}, v{e+3}
                """)
            a(f"""
            s_nop 1
            v_permlane16_swap_b32 v{O}, v{O+2}
            v_permlane16_swap_b32 v{O+1}, v{O+3}
            s_movk_i32 s{S_T2}, {nb*8192}
            """)
            a.vm(f"buffer_store_dwordx4 v[{O}:{O+3}], v{VA}, s[{SRD_OUT}:{SRD_OUT+3}], s{S_T2} offen offset:{mp*64}")
    a("s_endpgm")

def main_kernel(name):
    a = Asm()
    a.raw(f".globl {name}\n.p2align 8\n.type {name},@function\n{name}:")
    t_offs, t_h, t_w1 = setup(a)
    a.srd(SRD_TMP, S_WS, WS_WXF, 4096)
    a(f"v_lshlrev_b32 v3, 3, v{V_LANE}\ns_lshl_b32 s{S_T0}, s{S_W}, 10")
    for b in range(2):
        t_wx = a.vm(f"buffer_load_dwordx2 v[{V_TMP+8+2*b}:{V_TMP+9+2*b}], v3, s[{SRD_TMP}:{SRD_TMP+3}], s{S_T0} offen offset:{b*512}")
    a.srd(SRD_OUT, S_WX, 0, 512)
    a(f"v_lshrrev_b32 v3, 5, v{V_LANE}\nv_lshlrev_b32 v3, 3, v3\ns_lshl_b32 s{S_T0}, s{S_W}, 7")
    for b in range(2):
        for u in range(2):
            for t in range(2):
                d = A_WX + (b*2 + u)*4 + 2*t
                a.vm(f"buffer_load_dwordx2 a[{d}:{d+1}], v3, s[{SRD_OUT}:{SRD_OUT+3}], s{S_T0} offen offset:{b*64 + u*32 + t*16}")
    a.srd(SRD_BT, S_WS, WS_BT - 3072, N*512 + 3072)
    a.srd(SRD_R4, S_WS, WS_REC4, E*4)
    a.srd(SRD_R8, S_WS, WS_REC8, E*8)
    a.srd(SRD_PP, S_WS, WS_POSP, N*8)
    lds_init2(a)
    dma_consts(a)
    desc_scatter(a, t_offs)
    a(f"""
    s_mov_b32 s{S_BASE}, 0
    s_nop 2
    s_min_u32 s{S_NWIN}, s{S_N}, 1024
    """)
    desc_window(a, 1024)
    a.wait(t_h)
    a("s_barrier")
    t_rec = rec_loads(a)
    t_wh1 = wf_loads(a, 1, WH1, False)
    gemm_a(a, t_w1)
    t_pos = rank_phase(a, t_rec)
    group_bases(a)
    positions(a)
    dma_tile(a, 0); dma_tile(a, 1)
    a("s_nop 7")
    a.wait(t_wx)
    for i in range(4):
        a(f"v_mov_b32 v{V_W1+i}, v{V_TMP+8+i}")
    y_prep(a, t_wx)
    wf_loads(a, 2, WH2, True)
    gemm_h1(a, t_wh1)
    build_xs(a, t_pos)
    a("s_barrier")
    dma_tile(a, 2); dma_tile(a, 3)
    loop_consts(a)
    load_y(a, 0)
    zero_acc(a, 0); zero_acc(a, 1)
    a(f"""
    s_mov_b32 s{S_GY}, 0
    s_mov_b32 s{S_G0}, 0
    s_mov_b32 s{S_G1}, 0
    """)
    pipeline_fill(a)
    edge_loop(a)
    handlers(a)
    tail(a)
    a.label("L_main_exit")
    a("s_endpgm")
    return a.text()

if __name__ == "__main__":
    t = main_kernel("main_kernel"); print(len(t.splitlines()), MAIN_LDS)
```

```python
from asmlib import *
from layout import *

N_SORT, N_REF, N_GEMM = 50, 6, 200
PREP_LDS = 131072
PREP_GRID = N_SORT + N_REF + N_GEMM

S_H, S_POS, S_EA, S_SRC, S_DST, S_WE, S_WX, S_WH, S_WS = 4, 6, 8, 10, 12, 14, 16, 18, 20
S_WAVE = 22
SRD_A, SRD_B, SRD_C, SRD_D, SRD_E = 24, 28, 32, 36, 40

def w_slice_dma(a, srd, s_ch):
    a(f"""
    v_lshrrev_b32 v2, 4, v1
    v_bfe_u32 v3, v1, 1, 3
    v_xor_b32 v3, v3, v2
    v_lshlrev_b32 v3, 5, v3
    v_lshl_add_u32 v3, v2, 9, v3
    v_and_b32 v4, 1, v1
    v_lshl_add_u32 v3, v4, 4, v3
    v_xor_b32 v4, 0x80, v3
    s_lshl_b32 s44, s{S_WAVE}, 14
    s_lshl_b32 s45, s{s_ch}, 8
    s_add_u32 s44, s44, s45
    s_lshl_b32 s45, s{S_WAVE}, 13
    """)
    toks = []
    for u in range(8):
        z = (u >> 1) & 1
        a(f"s_add_u32 m0, s45, {u*1024}")
        if u:
            a(f"s_add_u32 s44, s44, 2048")
        else:
            a("s_nop 0")
        toks.append(a.vm(f"buffer_load_dwordx4 v{3+z}, s[{srd}:{srd+3}], s44 offen lds"))
    return toks

def tr_addr_16(a, dst, seg_s, seg_add):
    a(f"""
    v_lshrrev_b32 v10, 4, v1
    v_bfe_u32 v11, v1, 2, 2
    v_and_b32 v12, 1, v10
    v_lshl_or_b32 v12, v12, 2, v11
    s_add_u32 s46, s{seg_s}, {seg_add}
    v_xor_b32 v12, s46, v12
    v_lshlrev_b32 v12, 5, v12
    v_lshl_add_u32 v13, v10, 3, v11
    v_lshl_add_u32 v12, v13, 8, v12
    v_and_b32 v13, 3, v1
    v_lshl_add_u32 v{dst}, v13, 3, v12
    """)

def gemm_role(a):
    a.comment("---- B' = -log2e * (h @ W2): 100 rows x 128 columns per workgroup")
    a(f"""
    s_sub_u32 s3, s2, {N_SORT + N_REF}
    s_lshr_b32 s48, s3, 1
    s_and_b32 s49, s3, 1
    s_mul_i32 s50, s48, {100*512}
    """)
    a.srd(SRD_A, S_WE, 256*512, 256*512)
    a.srd(SRD_B, S_H, 0, N*512)
    a(f"s_add_u32 s51, s50, {WS_BT}")
    a.srd(SRD_C, S_WS, "s51", 100*512)
    w_slice_dma(a, SRD_A, 49)
    a(f"""
    v_lshrrev_b32 v5, 5, v1
    s_lshl_b32 s46, s{S_WAVE}, 1
    v_add_u32 v6, s46, v5
    v_and_b32 v7, 31, v1
    v_xor_b32 v6, v6, v7
    v_lshlrev_b32 v6, 4, v6
    v_lshl_add_u32 v6, v5, 9, v6
    s_lshl_b32 s46, s{S_WAVE}, 10
    s_add_u32 s47, s50, s46
    s_add_u32 s46, s46, 65536
    """)
    for u in range(7):
        a(f"s_add_u32 m0, s46, {u*8192}")
        if u:
            a(f"s_add_u32 s47, s47, 8192")
        else:
            a("s_nop 0")
        a.vm(f"buffer_load_dwordx4 v6, s[{SRD_B}:{SRD_B+3}], s47 offen lds")
    a(f"""
    s_and_b32 s52, s{S_WAVE}, 3
    s_lshr_b32 s53, s{S_WAVE}, 2
    s_lshl_b32 s54, s52, 1
    """)
    VA0, VA1, VB = 14, 15, 16
    tr_addr_16(a, VA0, 54, 0)
    tr_addr_16(a, VA1, 54, 1)
    a(f"""
    v_and_b32 v10, 15, v1
    v_lshrrev_b32 v11, 4, v1
    v_xor_b32 v11, v11, v10
    s_lshl_b32 s46, s53, 15
    s_add_u32 s46, s46, 65536
    v_lshl_add_u32 v12, v10, 9, s46
    """)
    for k in range(4):
        a(f"v_xor_b32 v13, {4*k}, v11\nv_lshl_add_u32 v{VB+k}, v13, 4, v12")
    VO = 20
    a(f"""
    v_lshrrev_b32 v11, 4, v1
    v_and_b32 v13, 1, v11
    v_lshlrev_b32 v13, 5, v13
    v_lshrrev_b32 v11, 1, v11
    v_lshl_add_u32 v13, v11, 4, v13
    v_lshl_add_u32 v13, v10, 9, v13
    s_lshl_b32 s46, s49, 8
    s_lshl_b32 s47, s52, 6
    s_add_u32 s46, s46, s47
    v_add_u32 v{VO}, s46, v13
    s_lshl_b32 s55, s53, 15
    """)
    a.wait_all(lgkm=False)
    a("s_barrier")
    ACC = 24
    BUF = [56, 80]
    def issue(s):
        b = BUF[s & 1]
        for mi, va in enumerate((VA0, VA1)):
            for t in range(2):
                a.ds(f"ds_read_b64_tr_b16 v[{b+4*mi+2*t}:{b+4*mi+2*t+1}], v{va} offset:{s*8192+t*1024}")
        tok = None
        for nbi in range(4):
            tok = a.ds(f"ds_read_b128 v[{b+8+4*nbi}:{b+8+4*nbi+3}], v{VB+(s&3)} offset:{nbi*8192+(s>>2)*256}")
        return tok
    tok = issue(0)
    for s in range(8):
        a.wait(tok)
        if s < 7:
            tok = issue(s + 1)
        b = BUF[s & 1]
        for nbi in range(4):
            for mi in range(2):
                d = ACC + (mi*4 + nbi)*4
                c = "0" if s == 0 else f"v[{d}:{d+3}]"
                a(f"v_mfma_f32_16x16x32_bf16 v[{d}:{d+3}], v[{b+4*mi}:{b+4*mi+3}], v[{b+8+4*nbi}:{b+8+4*nbi+3}], {c}")
    a(f"s_mov_b32 s46, {hex(NEG_LOG2E)}\ns_mov_b32 s47, s46\ns_nop 7")
    for nbi in range(4):
        for mi in range(2):
            d = ACC + (mi*4 + nbi)*4
            for p in range(2):
                a(f"v_pk_mul_f32 v[{d+2*p}:{d+2*p+1}], v[{d+2*p}:{d+2*p+1}], s[46:47]")
        T = 56 + 4*nbi
        d0, d1 = ACC + nbi*4, ACC + (4 + nbi)*4
        a(f"""
        v_cvt_pk_bf16_f32 v{T}, v{d0}, v{d0+1}
        v_cvt_pk_bf16_f32 v{T+1}, v{d0+2}, v{d0+3}
        v_cvt_pk_bf16_f32 v{T+2}, v{d1}, v{d1+1}
        v_cvt_pk_bf16_f32 v{T+3}, v{d1+2}, v{d1+3}
        s_nop 1
        v_permlane16_swap_b32 v{T}, v{T+2}
        v_permlane16_swap_b32 v{T+1}, v{T+3}
        """)
        a.vm(f"buffer_store_dwordx4 v[{T}:{T+3}], v{VO}, s[{SRD_C}:{SRD_C+3}], s55 offen")
        if nbi < 3:
            a("s_add_u32 s55, s55, 8192")
    a("s_endpgm")

def sort_role(a):
    a.comment("---- counting sort of one 3200-edge chunk by destination bucket")
    CNT, START, R4, R8 = 0, 1024, 2048, 16384
    NR = 7
    a(f"""
    s_mul_i32 s48, s2, {CH*4}
    s_mul_i32 s49, s2, {CH*8}
    """)
    a.srd(SRD_A, S_DST, "s48", CH*4)
    a.srd(SRD_B, S_SRC, "s48", CH*4)
    a.srd(SRD_C, S_EA, "s49", CH*8)
    a("v_lshlrev_b32 v2, 2, v0\nv_lshlrev_b32 v3, 3, v0")
    VD, VS, VE = 8, 16, 24
    tk = []
    for r in range(NR):
        a(f"s_movk_i32 s46, {r*2048}\ns_movk_i32 s47, {r*4096}")
        a.vm(f"buffer_load_dword v{VD+r}, v2, s[{SRD_A}:{SRD_A+3}], s46 offen")
        a.vm(f"buffer_load_dword v{VS+r}, v2, s[{SRD_B}:{SRD_B+3}], s46 offen")
        tk.append(a.vm(f"buffer_load_dwordx2 v[{VE+2*r}:{VE+2*r+1}], v3, s[{SRD_C}:{SRD_C+3}], s47 offen"))
    a(f"s_mul_i32 s50, s2, {200*6}\ns_mul_i32 s51, s2, {200*8}\ns_add_u32 s51, s51, {WS_POSP}")
    a.srd(SRD_D, S_POS, "s50", 200*6)
    a.srd(SRD_E, S_WS, "s51", 200*8)
    a("v_mul_u32_u24 v4, 6, v0")
    for c in range(3):
        tp = a.vm(f"buffer_load_ushort v{40+c}, v4, s[{SRD_D}:{SRD_D+3}], 0 offen offset:{2*c}")
    a(f"""
    v_mov_b32 v5, 0
    v_cmp_gt_u32 vcc, 256, v0
    s_and_saveexec_b64 s[52:53], vcc
    s_cbranch_execz L_sort_zero_done
    """)
    a.ds(f"ds_write_b32 v2, v5 offset:{CNT}")
    a.label("L_sort_zero_done")
    a("s_mov_b64 exec, s[52:53]")
    a.wait_all(vm=False)
    a("s_barrier")
    VB, VK = 44, 52
    a("s_mov_b32 s46, 52429\nv_mov_b32 v6, 1")
    for r in range(NR):
        if r == NR - 1:
            a(f"s_cmp_ge_u32 s{S_WAVE}, 2\ns_cbranch_scc1 L_sort_r6a")
        a.wait(tk[r])
        a(f"""
        v_mul_u32_u24 v5, s46, v{VD+r}
        v_lshrrev_b32 v5, 21, v5
        v_mul_u32_u24 v7, 40, v5
        v_sub_u32 v7, v{VD+r}, v7
        v_lshl_add_u32 v{VS+r}, v{VS+r}, 9, v7
        v_lshlrev_b32 v{VB+r}, 2, v5
        """)
        a.ds(f"ds_add_rtn_u32 v{VK+r}, v{VB+r}, v6 offset:{CNT}")
    a.label("L_sort_r6a")
    a.wait(tp)
    a(f"""
    v_lshl_or_b32 v40, v41, 16, v40
    v_mov_b32 v41, v42
    """)
    a.vm(f"buffer_store_dwordx2 v[40:41], v3, s[{SRD_E}:{SRD_E+3}], 0 offen")
    a.wait_all(vm=False)
    a("s_barrier")
    a(f"s_cmp_lg_u32 s{S_WAVE}, 0\ns_cbranch_scc1 L_sort_scan_done")
    a("v_lshlrev_b32 v4, 4, v1")
    a.ds(f"ds_read_b128 v[60:63], v4 offset:{CNT}")
    a.wait_all(vm=False)
    a("""
    v_add_u32 v65, v60, v61
    v_add_u32 v66, v65, v62
    v_add_u32 v67, v66, v63
    v_mov_b32 v68, v67
    s_nop 1
    v_add_u32_dpp v68, v68, v68 row_shr:1 row_mask:0xf bank_mask:0xf bound_ctrl:0
    s_nop 1
    v_add_u32_dpp v68, v68, v68 row_shr:2 row_mask:0xf bank_mask:0xf bound_ctrl:0
    s_nop 1
    v_add_u32_dpp v68, v68, v68 row_shr:4 row_mask:0xf bank_mask:0xf bound_ctrl:0
    s_nop 1
    v_add_u32_dpp v68, v68, v68 row_shr:8 row_mask:0xf bank_mask:0xf bound_ctrl:0
    s_nop 1
    v_add_u32_dpp v68, v68, v68 row_bcast:15 row_mask:0xa bank_mask:0xf
    s_nop 1
    v_add_u32_dpp v68, v68, v68 row_bcast:31 row_mask:0xc bank_mask:0xf
    v_sub_u32 v72, v68, v67
    v_add_u32 v73, v72, v60
    v_add_u32 v74, v72, v65
    v_add_u32 v75, v72, v66
    """)
    a.ds(f"ds_write_b128 v4, v[72:75] offset:{START}")
    a(f"s_lshl_b32 s50, s2, 2\ns_add_u32 s50, s50, {WS_OFFS}")
    a.srd(SRD_D, S_WS, "s50", NB*256 - 200)
    a("v_lshlrev_b32 v5, 10, v1")
    for i in range(4):
        a(f"v_lshl_or_b32 v{76+i}, v{60+i}, 16, v{72+i}")
        a.vm(f"buffer_store_dword v{76+i}, v5, s[{SRD_D}:{SRD_D+3}], 0 offen offset:{i*256}")
    a.wait_all(vm=False)
    a.label("L_sort_scan_done")
    a("s_barrier")
    VP = 60
    toks = []
    for r in range(NR):
        if r == NR - 1:
            a(f"s_cmp_ge_u32 s{S_WAVE}, 2\ns_cbranch_scc1 L_sort_r6b")
        toks.append(a.ds(f"ds_read_b32 v{VP+r}, v{VB+r} offset:{START}"))
    a.label("L_sort_r6b")
    a.wait_all(vm=False)
    for r in range(NR):
        if r == NR - 1:
            a(f"s_cmp_ge_u32 s{S_WAVE}, 2\ns_cbranch_scc1 L_sort_r6c")
        a(f"""
        v_add_u32 v5, v{VP+r}, v{VK+r}
        v_lshlrev_b32 v7, 3, v5
        v_lshlrev_b32 v5, 2, v5
        """)
        a.ds(f"ds_write_b32 v5, v{VS+r} offset:{R4}")
        a.ds(f"ds_write_b64 v7, v[{VE+2*r}:{VE+2*r+1}] offset:{R8}")
    a.label("L_sort_r6c")
    a.wait_all(vm=False)
    a("s_barrier")
    a(f"s_add_u32 s50, s48, {WS_REC4}\ns_add_u32 s51, s49, {WS_REC8}")
    a.srd(SRD_A, S_WS, "s50", CH*4)
    a.srd(SRD_B, S_WS, "s51", CH*8)
    a("v_lshlrev_b32 v4, 4, v0")
    outs = [(R4, SRD_A, 0), (R4, SRD_A, 8192), (R8, SRD_B, 0), (R8, SRD_B, 8192), (R8, SRD_B, 16384), (R8, SRD_B, 24576)]
    toks = [a.ds(f"ds_read_b128 v[{80+4*i}:{83+4*i}], v4 offset:{base+off}") for i, (base, srd, off) in enumerate(outs)]
    for i, (base, srd, off) in enumerate(outs):
        a(f"s_movk_i32 s46, {off}")
        a.wait(toks[i])
        a.vm(f"buffer_store_dwordx4 v[{80+4*i}:{83+4*i}], v4, s[{srd}:{srd+3}], s46 offen")
    a("s_endpgm")

def ref_role(a):
    a.comment("---- weight re-layout into MFMA fragment order, extras-weight split")
    a(f"""
    s_sub_u32 s3, s2, {N_SORT}
    s_lshr_b32 s48, s3, 1
    s_and_b32 s49, s3, 1
    s_cmp_eq_u32 s48, 0
    s_cselect_b32 s50, s{S_WE}, s{S_WH}
    s_cselect_b32 s51, s{S_WE+1}, s{S_WH+1}
    s_cmp_eq_u32 s48, 2
    s_cselect_b32 s52, {256*512}, 0
    """)
    a.srd(SRD_A, 50, "s52", 256*512)
    w_slice_dma(a, SRD_A, 49)
    a(f"""
    s_lshl_b32 s52, s48, 17
    s_add_u32 s52, s52, {WS_W1F}
    """)
    a.srd(SRD_B, S_WS, "s52", 131072)
    a(f"""
    s_cmp_lg_u32 s48, 0
    s_cbranch_scc1 L_ref_nowx
    s_cmp_ge_u32 s{S_WAVE}, 4
    s_cbranch_scc1 L_ref_nowx
    """)
    a.srd(SRD_C, S_WE, 512*512, 5*512)
    a.srd(SRD_D, S_WS, WS_WXF, 4096)
    a(f"""
    s_lshl_b32 s46, s49, 2
    s_add_u32 s46, s46, s{S_WAVE}
    v_and_b32 v20, 31, v1
    s_lshl_b32 s47, s46, 6
    v_lshl_add_u32 v20, v20, 1, s47
    """)
    for k in range(5):
        t = a.vm(f"buffer_load_ushort v{22+k}, v20, s[{SRD_C}:{SRD_C+3}], 0 offen offset:{k*512}")
    a.wait(t)
    a(f"s_mov_b32 s47, {hex(NEG_LOG2E)}")
    for k in range(5):
        a(f"""
        v_lshlrev_b32 v{22+k}, 16, v{22+k}
        v_mul_f32 v{22+k}, s47, v{22+k}
        v_cvt_pk_bf16_f32 v{28+k}, v{22+k}, v{22+k}
        v_and_b32 v27, 0xffff0000, v{28+k}
        v_sub_f32 v27, v{22+k}, v27
        v_cvt_pk_bf16_f32 v{34+k}, v27, v27
        """)
    a("""
    s_mov_b32 s47, 0xffff
    v_and_b32 v40, s47, v29
    v_lshl_or_b32 v40, v30, 16, v40
    v_and_b32 v41, s47, v31
    v_lshl_or_b32 v41, v32, 16, v41
    v_and_b32 v42, s47, v28
    v_lshl_or_b32 v42, v34, 16, v42
    v_and_b32 v43, s47, v35
    v_lshl_or_b32 v43, v36, 16, v43
    v_cmp_gt_u32 vcc, 32, v1
    s_nop 1
    v_cndmask_b32 v44, v42, v40, vcc
    v_cndmask_b32 v45, v43, v41, vcc
    v_lshlrev_b32 v20, 3, v1
    s_lshl_b32 s46, s46, 9
    """)
    a.vm(f"buffer_store_dwordx2 v[44:45], v20, s[{SRD_D}:{SRD_D+3}], s46 offen")
    a.label("L_ref_nowx")
    a.wait_all(lgkm=False)
    a("s_barrier")
    a("v_lshlrev_b32 v21, 4, v1")
    a("s_cmp_lg_u32 s48, 0\ns_cbranch_scc1 L_ref_k16")
    a(f"""
    s_lshr_b32 s52, s{S_WAVE}, 2
    s_bfe_u32 s53, s{S_WAVE}, 0x10001
    s_and_b32 s54, s{S_WAVE}, 1
    s_lshl_b32 s55, s52, 2
    s_lshl_b32 s56, s53, 1
    s_add_u32 s55, s55, s56
    v_lshrrev_b32 v10, 5, v1
    v_bfe_u32 v11, v1, 4, 1
    v_bfe_u32 v12, v1, 2, 2
    v_lshl_or_b32 v13, v10, 2, v12
    v_add_u32 v11, s55, v11
    v_xor_b32 v11, v11, v13
    v_lshlrev_b32 v11, 5, v11
    v_lshl_add_u32 v13, v10, 3, v12
    v_lshl_add_u32 v11, v13, 8, v11
    v_and_b32 v13, 3, v1
    v_lshl_add_u32 v11, v13, 3, v11
    s_lshl_b32 s56, s54, 15
    v_add_u32 v11, s56, v11
    s_lshl_b32 s56, s49, 1
    s_add_u32 s56, s56, s52
    s_lshl_b32 s56, s56, 1
    s_add_u32 s56, s56, s53
    s_lshl_b32 s56, s56, 4
    s_lshl_b32 s57, s54, 3
    s_add_u32 s56, s56, s57
    s_lshl_b32 s56, s56, 10
    """)
    toks = []
    for s in range(8):
        a.ds(f"ds_read_b64_tr_b16 v[{24+4*s}:{25+4*s}], v11 offset:{s*4096}")
        toks.append(a.ds(f"ds_read_b64_tr_b16 v[{26+4*s}:{27+4*s}], v11 offset:{s*4096+1024}"))
        if s == 6:
            a.wait(toks[0])
    for s in range(8):
        a.wait(toks[s])
        a.vm(f"buffer_store_dwordx4 v[{24+4*s}:{27+4*s}], v21, s[{SRD_B}:{SRD_B+3}], s56 offen")
        if s < 7:
            a("s_add_u32 s56, s56, 1024")
    a("s_endpgm")
    a.label("L_ref_k16")
    a.n["lgkm"] = a.done["lgkm"] = 0
    a(f"""
    s_lshr_b32 s52, s{S_WAVE}, 2
    s_and_b32 s53, s{S_WAVE}, 3
    s_lshl_b32 s55, s52, 2
    s_add_u32 s55, s55, s53
    """)
    tr_addr_16(a, 11, 55, 0)
    a(f"""
    s_lshl_b32 s56, s49, 1
    s_add_u32 s56, s56, s52
    s_lshl_b32 s56, s56, 2
    s_add_u32 s56, s56, s53
    s_lshl_b32 s56, s56, 13
    """)
    toks = []
    for s in range(8):
        a.ds(f"ds_read_b64_tr_b16 v[{24+4*s}:{25+4*s}], v11 offset:{s*8192}")
        toks.append(a.ds(f"ds_read_b64_tr_b16 v[{26+4*s}:{27+4*s}], v11 offset:{s*8192+1024}"))
        if s == 6:
            a.wait(toks[0])
    for s in range(8):
        a.wait(toks[s])
        a.vm(f"buffer_store_dwordx4 v[{24+4*s}:{27+4*s}], v21, s[{SRD_B}:{SRD_B+3}], s56 offen")
        if s < 7:
            a("s_add_u32 s56, s56, 1024")
    a("s_endpgm")

def prep_kernel(name):
    a = Asm()
    a.raw(f".globl {name}\n.p2align 8\n.type {name},@function\n{name}:")
    a(f"""
    s_cmp_ge_u32 s2, {PREP_GRID}
    s_cbranch_scc1 L_prep_exit
    s_load_dwordx16 s[4:19], s[0:1], 0
    s_load_dwordx2 s[20:21], s[0:1], 80
    v_and_b32 v1, 63, v0
    v_lshrrev_b32 v2, 6, v0
    s_nop 0
    v_readfirstlane_b32 s{S_WAVE}, v2
    s_waitcnt lgkmcnt(0)
    s_cmp_lt_u32 s2, {N_SORT}
    s_cbranch_scc1 L_prep_sort
    s_cmp_lt_u32 s2, {N_SORT + N_REF}
    s_cbranch_scc1 L_prep_ref
    """)
    gemm_role(a)
    a.label("L_prep_sort")
    a.n = {"vm": 0, "lgkm": 0}; a.done = {"vm": 0, "lgkm": 0}
    sort_role(a)
    a.label("L_prep_ref")
    a.n = {"vm": 0, "lgkm": 0}; a.done = {"vm": 0, "lgkm": 0}
    ref_role(a)
    a.label("L_prep_exit")
    a("s_endpgm")
    return a.text()
```

```python
N, E, D = 10000, 160000, 256
NB = 250
NPB = 40
G = 50
CH = 3200
WS_BT   = 0x001000
WS_REC4 = 0x500000
WS_REC8 = 0x5A0000
WS_OFFS = 0x700000
WS_POSP = 0x720000
WS_W1F  = 0x740000
WS_WH1F = 0x760000
WS_WH2F = 0x780000
WS_WXF  = 0x7A0000
NEG_LOG2E = 0xbfb8aa3b
NEG_LN2   = 0xbf317218
```

```python
import sys
sys.path.insert(0, "gen")
import importlib
import k_prep, k_main
from layout import *

HEADER = """; Kernarg layout for this problem (88 bytes, ptrs only, base s[0:1]):
"""

def kd(name, vgpr, accum, sgpr=96):
    return f""".section .rodata,"a"
.p2align 6
.amdhsa_kernel {name}
  .amdhsa_next_free_vgpr {vgpr}
  .amdhsa_next_free_sgpr {sgpr}
  .amdhsa_accum_offset {accum}
  .amdhsa_group_segment_fixed_size 0
  .amdhsa_kernarg_size 88
  .amdhsa_user_sgpr_count 2
  .amdhsa_user_sgpr_kernarg_segment_ptr 1
  .amdhsa_system_sgpr_workgroup_id_x 1
  .amdhsa_float_denorm_mode_32 3
.end_amdhsa_kernel
.text
"""

def generate():
    p = "egnn_prep_kernel"; m = "egnn_main_kernel"
    s = HEADER
    s += f"; @launch kernel={p} grid=({k_prep.PREP_GRID},1,1) block=(512,1,1) lds={k_prep.PREP_LDS}\n"
    s += f"; @launch kernel={m} grid=({NB},1,1) block=(256,1,1) lds={k_main.MAIN_LDS}\n"
    s += '.amdgcn_target "amdgcn-amd-amdhsa--gfx950"\n.text\n'
    s += k_prep.prep_kernel(p) + kd(p, 128, 128)
    s += k_main.main_kernel(m) + kd(m, 512, 256)
    return s

if __name__ == "__main__":
    out = sys.argv[1] if len(sys.argv) > 1 else "standalone__cheap_equivariant_egnn__graph.s"
    open(out, "w").write(generate())
    print("wrote", out)
```

```python
STAMP = [False]

class Tok:
    __slots__ = ("cls", "idx")
    def __init__(self, cls, idx):
        self.cls, self.idx = cls, idx

class Asm:
    def __init__(self):
        self.lines = []
        self.n = {"vm": 0, "lgkm": 0}
        self.done = {"vm": 0, "lgkm": 0}
        self.uid = 0

    def __call__(self, s):
        for ln in s.strip("\n").split("\n"):
            ln = ln.strip()
            if ln:
                self.lines.append("  " + ln)

    def label(self, name):
        self.lines.append(name + ":")

    def comment(self, s):
        self.lines.append("  ; " + s)

    def raw(self, s):
        self.lines.append(s)

    def fresh(self, base):
        self.uid += 1
        return f"{base}_{self.uid}"

    def vm(self, s):
        self(s)
        self.n["vm"] += 1
        return Tok("vm", self.n["vm"])

    def ds(self, s):
        self(s)
        self.n["lgkm"] += 1
        return Tok("lgkm", self.n["lgkm"])

    def wait(self, *toks):
        need = {}
        for t in toks:
            if t is None:
                continue
            if t.idx > self.done[t.cls]:
                need[t.cls] = max(need.get(t.cls, 0), t.idx)
        parts = []
        for cls, name, mx in (("vm", "vmcnt", 63), ("lgkm", "lgkmcnt", 15)):
            if cls in need:
                cnt = min(self.n[cls] - need[cls], mx)
                parts.append(f"{name}({cnt})")
                self.done[cls] = self.n[cls] - cnt
        if parts:
            self("s_waitcnt " + " ".join(parts))

    def wait_all(self, vm=True, lgkm=True):
        parts = []
        if vm:
            parts.append("vmcnt(0)"); self.done["vm"] = self.n["vm"]
        if lgkm:
            parts.append("lgkmcnt(0)"); self.done["lgkm"] = self.n["lgkm"]
        self("s_waitcnt " + " ".join(parts))

    def srd(self, d, lo, off, size):
        if off == 0:
            self(f"s_mov_b32 s{d}, s{lo}\ns_mov_b32 s{d+1}, s{lo+1}")
        else:
            o = off if isinstance(off, str) else hex(off)
            self(f"s_add_u32 s{d}, s{lo}, {o}\ns_addc_u32 s{d+1}, s{lo+1}, 0")
        self(f"s_mov_b32 s{d+2}, {size}\ns_mov_b32 s{d+3}, 0x20000")

    def stamp(self, i):
        if not STAMP[0]:
            return
        self("s_memrealtime s[84:85]\ns_waitcnt lgkmcnt(0)\ns_mov_b32 s%d, s84" % (86 + i))
        self.done["lgkm"] = self.n["lgkm"]

    def cstamp(self, i):
        if not STAMP[0]:
            return
        self("s_memtime s[84:85]\ns_waitcnt lgkmcnt(0)\ns_mov_b32 s%d, s84" % (86 + i))
        self.done["lgkm"] = self.n["lgkm"]

    def stamp_flush(self, ws, base, n, wave_sgpr, vtmp):
        if not STAMP[0]:
            return
        if STAMP[0] == "dbg":
            if base != 0x800000:
                return
            lab = self.fresh("L_stamp")
            self(f"s_cmp_lg_u32 s{wave_sgpr}, 0\ns_cbranch_scc1 {lab}")
            self("s_mov_b32 s82, -1\ns_cmp_eq_u32 s2, 0\ns_cselect_b32 s82, 0, s82\ns_cmp_eq_u32 s2, 56\ns_cselect_b32 s82, 16, s82\ns_cmp_eq_u32 s2, 255\ns_cselect_b32 s82, 32, s82\ns_cmp_eq_u32 s2, 49\ns_cselect_b32 s82, 48, s82")
            self(f"s_cmp_eq_u32 s82, -1\ns_cbranch_scc1 {lab}")
            self("s_load_dwordx2 s[80:81], s[0:1], 72\ns_waitcnt lgkmcnt(0)\ns_add_u32 s80, s80, s82\ns_addc_u32 s81, s81, 0\ns_mov_b32 s82, 16\ns_mov_b32 s83, 0x20000")
            self(f"v_mov_b32 v{vtmp+1}, 0")
            for i in range(3):
                self(f"v_mov_b32 v{vtmp}, s{86+i}\nbuffer_store_dword v{vtmp}, v{vtmp+1}, s[80:83], 0 offen offset:{4*i}\ns_nop 1")
            self.label(lab)
            return
        lab = self.fresh("L_stamp")
        self(f"s_cmp_lg_u32 s{wave_sgpr}, 0\ns_cbranch_scc1 {lab}")
        self(f"s_lshl_b32 s82, s2, 6\ns_add_u32 s82, s82, {base}")
        self(f"s_add_u32 s80, s{ws}, s82\ns_addc_u32 s81, s{ws+1}, 0\ns_mov_b32 s82, 64\ns_mov_b32 s83, 0x20000")
        self(f"v_mov_b32 v{vtmp+1}, 0")
        for i in range(n):
            self(f"v_mov_b32 v{vtmp}, s{86+i}\nbuffer_store_dword v{vtmp}, v{vtmp+1}, s[80:83], 0 offen offset:{4*i}\ns_nop 1")
        self.label(lab)

    def text(self):
        return "\n".join(self.lines) + "\n"

def vr(b, n=1):
    return f"v{b}" if n == 1 else f"v[{b}:{b+n-1}]"
def ar(b, n=1):
    return f"a{b}" if n == 1 else f"a[{b}:{b+n-1}]"
def sr(b, n=1):
    return f"s{b}" if n == 1 else f"s[{b}:{b+n-1}]"


class Rec:
    def __init__(self):
        self.ops = []
    def __call__(self, s):
        for ln in s.strip("\n").split("\n"):
            ln = ln.strip()
            if ln:
                self.ops.append(("i", ln))
    def atomic(self, s):
        self.ops.append(("i", "\n".join(l.strip() for l in s.strip("\n").split("\n") if l.strip())))
    def vm(self, s):
        t = Tok("vm", None); self.ops.append(("vm", s, t)); return t
    def ds(self, s):
        t = Tok("lgkm", None); self.ops.append(("ds", s, t)); return t
    def masked_ds(self, mask, lines):
        toks = [Tok("lgkm", None) for _ in lines]
        self.ops.append(("mds", mask, lines, toks)); return toks
    def wait(self, *toks):
        self.ops.append(("wait", toks))
    def wait_all(self, vm=True, lgkm=True):
        self.ops.append(("waitall", vm, lgkm))
    def at(self, k):
        self.ops.append(("at", k))
    def srd(self, d, lo, off, size):
        tmp = Asm(); tmp.srd(d, lo, off, size)
        self.ops.append(("i", "\n".join(ln.strip() for ln in tmp.lines)))
    def stamp(self, i):
        self.ops.append(("stamp", i))
    def comment(self, s):
        pass

def play(a, op):
    k = op[0]
    if k == "i": a(op[1])
    elif k == "vm":
        t = a.vm(op[1]); op[2].idx = t.idx
    elif k == "ds":
        t = a.ds(op[1]); op[2].idx = t.idx
    elif k == "mds":
        a(f"s_mov_b64 exec, {op[1]}")
        for ln, tok in zip(op[2], op[3]):
            t = a.ds(ln); tok.idx = t.idx
        a("s_mov_b64 exec, -1")
    elif k == "wait": a.wait(*op[1])
    elif k == "waitall": a.wait_all(op[1], op[2])
    elif k == "stamp": a.stamp(op[1])

class Merger:
    def __init__(self, a, rec):
        self.a, self.ops, self.pos, self.tick = a, rec.ops, 0, 0
    def step(self, budget):
        self.tick += 1
        n = 0
        while self.pos < len(self.ops) and n < budget:
            op = self.ops[self.pos]
            if op[0] == "at":
                if op[1] > self.tick:
                    return
                self.pos += 1
                continue
            play(self.a, op)
            self.pos += 1
            n += 1
    def drain(self):
        while self.pos < len(self.ops):
            op = self.ops[self.pos]
            if op[0] != "at":
                play(self.a, op)
            self.pos += 1

def masked_ds(a, mask, lines):
    if isinstance(a, Rec):
        return a.masked_ds(mask, lines)
    a(f"s_mov_b64 exec, {mask}")
    toks = [a.ds(ln) for ln in lines]
    a("s_mov_b64 exec, -1")
    return toks
```

```python
from asmlib import *
from asmlib import STAMP
from layout import *
import os
EXP = set(os.environ.get('EXP', '').split(','))

TMAX = 28
FAST_CAP, SLOW_CAP = 768, 512
NR = 3
L_RING = 0
L_HT = 32768
L_DESC = 0
L_XS = 65536
L_SRC = L_XS + (TMAX + 1) * 3072
L_CNT = L_SRC + (TMAX + 6) * 128
MAIN_LDS = L_CNT + 64
L_MT = 0
MT_STRIDE = 544
L_PP = 32768
SRC_PAD = 0x7F000000
assert MAIN_LDS <= 163840, MAIN_LDS

S_H, S_WX, S_OUT, S_WS = 4, 6, 8, 10
S_W, S_NODE0 = 12, 13
SRD_BT, SRD_R4, SRD_R8, SRD_PP, SRD_H, SRD_WF, SRD_OUT, SRD_TMP = 16, 20, 24, 28, 32, 36, 40, 44
S_M0 = 48
S_WOFF, S_FM = 52, 53
S_GY, S_G0, S_G1 = 54, 55, 56
S_N, S_NT = 57, 58
S_WFO = 59
S_RET = 60
S_MASK = 62
S_T0, S_T1, S_T2, S_T3 = 70, 71, 72, 73
S_BASE, S_NWIN, S_SLOW = 74, 75, 76
S_K = 78
S_EX = 68
S_HI = 77

V_T = [0, 16]; V_E = 32; V_M = 48; V_Y = [56, 60]; V_ACC = [64, 80]
V_SRCV, V_DA, V_COL, V_AGA = 96, 100, 104, 108
V_AXS, V_ASRC, V_TID, V_LANE = 112, 113, 114, 115
V_YS = 116
V_CNT, V_EXC, V_IDX, V_L16 = 156, 157, 158, 159
V_MP = 160
V_WX = 240
def MP(g, b): return V_MP + (g*2 + b)*8
def YS(g, b): return V_YS + (g*2 + b)*4
V_AP = {(0, 0): 0, (0, 1): 16, (1, 0): 32, (1, 1): 48}
A_WF = 0; A_H1 = 128
A_GA = [176, 184]; A_X = 192; A_S = 196; A_ID = [204, 208]; A_Z = 212
A_HR = 216; A_WX = 240

M32 = "v_mfma_f32_32x32x16_bf16"
M16 = "v_mfma_f32_16x16x32_bf16"

class Ctx:
    def __init__(self, rb, tb):
        self.rb, self.tb = rb, tb
    def REC(self, r): return self.rb + 10*r
    def P(self, r): return self.rb + 10*r + 1
    def EA(self, r): return self.rb + 10*r + 2
    def PS(self, r): return self.rb + 10*r + 6
    def PD(self, r): return self.rb + 10*r + 8
FAST = Ctx(160, 205)
SLOW = Ctx(0, 40)
def mask(r): return f"s[{S_MASK+2*r}:{S_MASK+2*r+1}]"

def lds_small_init(a, B):
    nsrc = (TMAX + 6) * 128 // 16
    a(f"""
    v_mov_b32 v{B}, {hex(SRC_PAD)}
    v_mov_b32 v{B+1}, v{B}
    v_mov_b32 v{B+2}, v{B}
    v_mov_b32 v{B+3}, v{B}
    v_lshlrev_b32 v{B+4}, 4, v{V_TID}
    v_add_u32 v{B+4}, {L_SRC}, v{B+4}
    """)
    a.ds(f"ds_write_b128 v{B+4}, v[{B}:{B+3}]")
    a(f"v_cmp_gt_u32 s[{S_EX}:{S_EX+1}], {nsrc - 256}, v{V_TID}\nv_mov_b32 v{B+5}, 0\nv_lshlrev_b32 v{B+6}, 2, v{V_TID}\nv_add_u32 v{B+6}, {L_CNT}, v{B+6}")
    masked_ds(a, f"s[{S_EX}:{S_EX+1}]", [f"ds_write_b128 v{B+4}, v[{B}:{B+3}] offset:4096"])
    a(f"v_cmp_gt_u32 s[{S_EX}:{S_EX+1}], 8, v{V_TID}\ns_nop 3")
    masked_ds(a, f"s[{S_EX}:{S_EX+1}]", [f"ds_write_b32 v{B+6}, v{B+5}"])

def lds_zero_xs(a, B):
    a(f"""
    v_mov_b32 v{B}, 0
    v_mov_b32 v{B+1}, 0
    v_mov_b32 v{B+2}, 0
    v_mov_b32 v{B+3}, 0
    v_lshlrev_b32 v{B+4}, 4, v{V_TID}
    v_add_u32 v{B+4}, {L_XS}, v{B+4}
    v_add_u32 v{B+5}, 0xc000, v{B+4}
    """)
    total = (TMAX + 1) * 3072
    for k in range(0, total, 4096):
        reg, off = (B+4, k) if k < 0xc000 else (B+5, k - 0xc000)
        if k + 4096 <= total:
            a.ds(f"ds_write_b128 v{reg}, v[{B}:{B+3}] offset:{off}")
        else:
            a(f"v_cmp_gt_u32 vcc, {(total - k)//16}, v{V_TID}\ns_nop 3\ns_mov_b64 s[{S_EX}:{S_EX+1}], vcc")
            masked_ds(a, f"s[{S_EX}:{S_EX+1}]", [f"ds_write_b128 v{reg}, v[{B}:{B+3}] offset:{off}"])

def scan_offs(a, vent, B):
    a(f"""
    v_lshrrev_b32 v{V_CNT}, 16, v{vent}
    v_and_b32 v{B}, 0xffff, v{vent}
    v_mov_b32 v{B+1}, v{V_CNT}
    v_mul_u32_u24 v{V_IDX}, {CH}, v{V_LANE}
    v_add_u32 v{V_IDX}, v{V_IDX}, v{B}
    """)
    for ctl in ("row_shr:1 row_mask:0xf bank_mask:0xf bound_ctrl:0", "row_shr:2 row_mask:0xf bank_mask:0xf bound_ctrl:0",
                "row_shr:4 row_mask:0xf bank_mask:0xf bound_ctrl:0", "row_shr:8 row_mask:0xf bank_mask:0xf bound_ctrl:0",
                "row_bcast:15 row_mask:0xa bank_mask:0xf", "row_bcast:31 row_mask:0xc bank_mask:0xf"):
        a(f"v_add_u32_dpp v{B+1}, v{B+1}, v{B+1} {ctl}\ns_nop 1")
    a(f"v_readlane_b32 s{S_N}, v{B+1}, 63\nv_sub_u32 v{V_EXC}, v{B+1}, v{V_CNT}")

def desc_window(a, cap, B):
    lab, done = a.fresh("L_desc"), a.fresh("L_desc_done")
    a(f"""
    v_subrev_u32 v{B}, s{S_BASE}, v{V_EXC}
    v_sub_u32 v{B+1}, 0, v{B}
    v_max_i32 v{B+1}, 0, v{B+1}
    v_sub_u32 v{B+2}, {cap}, v{B}
    v_min_i32 v{B+2}, v{B+2}, v{V_CNT}
    v_add_u32 v{B+1}, s{S_W}, v{B+1}
    v_add_u32 v{B+3}, v{B+1}, v{V_IDX}
    v_add_u32 v{B+4}, v{B+1}, v{B}
    v_lshlrev_b32 v{B+4}, 2, v{B+4}
    """)
    a.label(lab)
    a(f"""
    v_cmp_lt_i32 vcc, v{B+1}, v{B+2}
    v_add_u32 v{B+1}, 4, v{B+1}
    s_and_b64 exec, exec, vcc
    s_cbranch_scc0 {done}
    ds_write_b32 v{B+4}, v{B+3} offset:{L_DESC}
    v_add_u32 v{B+3}, 4, v{B+3}
    v_add_u32 v{B+4}, 16, v{B+4}
    s_branch {lab}
    """)
    a.label(done)
    a("s_mov_b64 exec, -1")
    a.wait_all(vm=False)

def rec_loads(a, c):
    B = c.tb
    a(f"v_lshlrev_b32 v{B}, 2, v{V_TID}")
    toks = [a.ds(f"ds_read_b32 v{B+1+r}, v{B} offset:{L_DESC + r*1024}") for r in range(NR)]
    for r in range(NR):
        a(f"s_sub_i32 s{S_T0}, s{S_NWIN}, {256*r}\nv_cmp_gt_i32 {mask(r)}, s{S_T0}, v{V_TID}")
    a(f"v_mov_b32 v{B+4}, 0x0fffffff")
    a.wait(toks[-1])
    out = {}
    for r in range(NR):
        a(f"""
        v_cndmask_b32 v{B+1+r}, v{B+4}, v{B+1+r}, {mask(r)}
        v_lshlrev_b32 v{B+5}, 2, v{B+1+r}
        v_lshlrev_b32 v{B+6}, 3, v{B+1+r}
        """)
        a.vm(f"buffer_load_dword v{c.REC(r)}, v{B+5}, s[{SRD_R4}:{SRD_R4+3}], 0 offen")
        out[r] = a.vm(f"buffer_load_dwordx2 v[{c.EA(r)}:{c.EA(r)+1}], v{B+6}, s[{SRD_R8}:{SRD_R8+3}], 0 offen")
    return out

def rank_phase(a, c, t_rec):
    B = c.tb
    a(f"v_mov_b32 v{B+3}, 1\nv_mov_b32 v{B+4}, {L_CNT}\ns_lshl_b32 s{S_T1}, s{S_NODE0}, 3")
    toks = {}
    for r in range(NR):
        a.wait(t_rec[r])
        R = c.REC(r)
        a(f"""
        v_bfe_u32 v{B}, v{R}, 3, 3
        v_lshl_add_u32 v{B}, v{B}, 2, v{B+4}
        v_lshrrev_b32 v{B+1}, 9, v{R}
        v_lshlrev_b32 v{B+1}, 3, v{B+1}
        v_and_b32 v{B+2}, 63, v{R}
        v_lshlrev_b32 v{B+2}, 3, v{B+2}
        """)
        masked_ds(a, mask(r), [f"ds_add_rtn_u32 v{c.P(r)}, v{B}, v{B+3}"])
        a.vm(f"buffer_load_dwordx2 v[{c.PS(r)}:{c.PS(r)+1}], v{B+1}, s[{SRD_PP}:{SRD_PP+3}], 0 offen")
        toks[r] = a.vm(f"buffer_load_dwordx2 v[{c.PD(r)}:{c.PD(r)+1}], v{B+2}, s[{SRD_PP}:{SRD_PP+3}], s{S_T1} offen")
    return toks

def group_bases(a, c):
    B = c.tb
    a(f"""
    v_min_u32 v{B}, 7, v{V_LANE}
    v_lshlrev_b32 v{B}, 2, v{B}
    v_add_u32 v{B}, {L_CNT}, v{B}
    """)
    t = a.ds(f"ds_read_b32 v{B+1}, v{B}")
    a(f"v_cmp_gt_u32 vcc, 5, v{V_LANE}")
    a.wait(t)
    a(f"""
    v_add_u32 v{B+1}, 31, v{B+1}
    v_lshrrev_b32 v{B+1}, 5, v{B+1}
    v_max_u32 v{B+1}, 1, v{B+1}
    v_cndmask_b32 v{B+1}, 0, v{B+1}, vcc
    v_mov_b32 v{B+2}, v{B+1}
    s_nop 1
    """)
    for sh in (1, 2, 4):
        a.atomic(f"v_add_u32_dpp v{B+2}, v{B+2}, v{B+2} row_shr:{sh} row_mask:0xf bank_mask:0xf bound_ctrl:0\ns_nop 1") if isinstance(a, Rec) else \
            a(f"v_add_u32_dpp v{B+2}, v{B+2}, v{B+2} row_shr:{sh} row_mask:0xf bank_mask:0xf bound_ctrl:0\ns_nop 1")
    a(f"""
    v_sub_u32 v{B+3}, v{B+2}, v{B+1}
    v_lshlrev_b32 v{B+3}, 5, v{B+3}
    s_mov_b32 s{S_FM}, 0
    """)
    for g in range(5):
        a(f"""
        v_readlane_b32 s{S_T0}, v{B+2}, {g}
        s_nop 0
        s_lshl_b32 s{S_T0}, 1, s{S_T0}
        s_or_b32 s{S_FM}, s{S_FM}, s{S_T0}
        """)

def positions(a, c):
    B = c.tb
    toks = {}
    for r in range(NR):
        a(f"v_bfe_u32 v{B+4+r}, v{c.REC(r)}, 3, 3\nv_lshlrev_b32 v{B+4+r}, 2, v{B+4+r}")
        toks[r] = a.ds(f"ds_bpermute_b32 v{B+8+r}, v{B+4+r}, v{B+3}")
    for r in range(NR):
        a.wait(toks[r])
        P = c.P(r)
        a(f"""
        v_add_u32 v{P}, v{P}, v{B+8+r}
        v_lshrrev_b32 v{B+12}, 5, v{P}
        v_and_b32 v{B+13}, 7, v{P}
        v_lshlrev_b32 v{B+13}, 4, v{B+13}
        v_lshl_add_u32 v{B+12}, v{B+12}, 7, v{B+13}
        v_bfe_u32 v{B+13}, v{P}, 3, 2
        v_lshl_add_u32 v{B+12}, v{B+13}, 2, v{B+12}
        v_add_u32 v{B+12}, {L_SRC}, v{B+12}
        v_and_b32 v{B+13}, 0xfffffe00, v{c.REC(r)}
        """)
        masked_ds(a, mask(r), [f"ds_write_b32 v{B+12}, v{B+13}"])

def dma_consts(a, B):
    a(f"""
    v_and_b32 v{B}, 7, v{V_LANE}
    v_lshrrev_b32 v{B+1}, 4, v{V_LANE}
    v_xor_b32 v{B}, v{B}, v{B+1}
    v_lshlrev_b32 v{B}, 4, v{B}
    v_xor_b32 v{B+1}, 64, v{B}
    v_add_u32 v{V_COL}, 3072, v{B}
    v_add_u32 v{V_COL+1}, 2048, v{B+1}
    v_add_u32 v{V_COL+2}, 1024, v{B}
    v_mov_b32 v{V_COL+3}, v{B+1}
    s_lshl_b32 s{S_WOFF}, s{S_W}, 7
    s_lshl_b32 s{S_T0}, s{S_W}, 12
    """)
    for u in range(4):
        a(f"s_add_u32 s{S_M0+u}, s{S_T0}, {u*16384}")

def addr_reset(a):
    a(f"""
    v_lshrrev_b32 v{V_ASRC}, 3, v{V_LANE}
    v_lshlrev_b32 v{V_ASRC}, 4, v{V_ASRC}
    v_add_u32 v{V_ASRC}, {L_SRC}, v{V_ASRC}
    v_add_u32 v{V_AXS}, {L_XS}, v{V_L16}
    """)

def dma_tile(a, tile):
    t = a.ds(f"ds_read_b128 v[{V_SRCV}:{V_SRCV+3}], v{V_ASRC} offset:{tile*128}")
    a.wait(t)
    for i in range(4):
        a(f"v_add_u32 v{V_DA+i}, v{V_SRCV+i}, v{V_COL+i}")
    txt = f"s_mov_b32 m0, s{S_M0 + (tile & 3)}\ns_nop 0"
    a.atomic(txt) if isinstance(a, Rec) else a(txt)
    tok = None
    for i in range(4):
        tok = a.vm(f"buffer_load_dwordx4 v{V_DA+i}, s[{SRD_BT}:{SRD_BT+3}], s{S_WOFF} offen offset:{i*1024} lds")
    return tok

def build_xs(a, c, t_pos):
    B = c.tb
    a(f"v_mov_b32 v{B+15}, 0x3f80")
    for r in range(NR):
        a.wait(t_pos[r])
        R, P, EA, PS, PD = c.REC(r), c.P(r), c.EA(r), c.PS(r), c.PD(r)
        a(f"""
        v_lshlrev_b32 v{B}, 16, v{PS}
        v_and_b32 v{B+1}, s{S_HI}, v{PS}
        v_lshlrev_b32 v{B+2}, 16, v{PS+1}
        v_lshlrev_b32 v{B+3}, 16, v{PD}
        v_and_b32 v{B+4}, s{S_HI}, v{PD}
        v_lshlrev_b32 v{B+5}, 16, v{PD+1}
        v_sub_f32 v{B}, v{B+3}, v{B}
        v_sub_f32 v{B+1}, v{B+4}, v{B+1}
        v_sub_f32 v{B+2}, v{B+5}, v{B+2}
        v_cvt_pk_bf16_f32 v{PS}, v{B}, v{B+1}
        v_cvt_pk_bf16_f32 v{PS+1}, v{B+2}, v{B+2}
        v_lshrrev_b32 v{B+6}, 5, v{P}
        v_mul_u32_u24 v{B+6}, 3072, v{B+6}
        v_add_u32 v{B+6}, {L_XS}, v{B+6}
        v_lshlrev_b32 v{B}, 16, v{PS}
        v_and_b32 v{B+1}, s{S_HI}, v{PS}
        v_lshlrev_b32 v{B+2}, 16, v{PS+1}
        v_mul_f32 v{B+2}, v{B+2}, v{B+2}
        v_fmac_f32 v{B+2}, v{B+1}, v{B+1}
        v_fmac_f32 v{B+2}, v{B}, v{B}
        v_and_b32 v{B+7}, 31, v{P}
        v_and_b32 v{B+8}, 7, v{R}
        v_cvt_pk_bf16_f32 v{EA+2}, v{B+2}, v{B+2}
        v_mov_b32 v{EA+3}, v{EA}
        v_lshl_add_u32 v{B+9}, v{B+7}, 4, v{B+6}
        v_lshl_add_u32 v{B+10}, v{B+8}, 1, v{B+9}
        v_bfe_u32 v{B+11}, v{B+7}, 4, 1
        v_lshl_add_u32 v{B+12}, v{B+11}, 10, v{B+6}
        v_bfe_u32 v{B+11}, v{B+7}, 2, 1
        v_lshl_add_u32 v{B+12}, v{B+11}, 9, v{B+12}
        v_and_b32 v{B+11}, 8, v{B+7}
        v_add_u32 v{B+12}, v{B+11}, v{B+12}
        v_and_b32 v{B+11}, 3, v{B+7}
        v_lshl_add_u32 v{B+12}, v{B+11}, 1, v{B+12}
        v_lshl_add_u32 v{B+12}, v{B+8}, 6, v{B+12}
        """)
        masked_ds(a, mask(r), [
            f"ds_write_b128 v{B+9}, v[{EA}:{EA+3}]",
            f"ds_write_b16 v{B+10}, v{B+15} offset:512",
            f"ds_write_b16 v{B+12}, v{B+15} offset:1024",
            f"ds_write_b16 v{B+12}, v{PS} offset:1040",
            f"ds_write_b16_d16_hi v{B+12}, v{PS} offset:1056",
            f"ds_write_b16 v{B+12}, v{PS+1} offset:1072"])

def y_prep(a):
    for b in range(2):
        for g in range(5):
            src = V_AP[(0, b)] + 4*g if g < 4 else V_AP[(1, b)]
            y = YS(g, b)
            for i in range(4):
                a(f"v_mul_f32 v{src+i}, s{S_K}, v{src+i}")
            a(f"""
            v_mov_b32 v{y}, v{V_WX+2*b}
            v_mov_b32 v{y+1}, v{V_WX+2*b+1}
            v_cvt_pk_bf16_f32 v{y+2}, v{src}, v{src+1}
            v_cvt_pk_bf16_f32 v{y+3}, v{src+2}, v{src+3}
            """)
            txt = f"s_nop 1\nv_permlane32_swap_b32 v{y}, v{y+2}\nv_permlane32_swap_b32 v{y+1}, v{y+3}"
            a.atomic(txt) if isinstance(a, Rec) else a(txt)

def loop_consts(a, B):
    L = V_LANE
    a(f"""
    v_and_b32 v{B}, 31, v{L}
    v_lshrrev_b32 v{B+1}, 5, v{L}
    v_lshlrev_b32 v{B+2}, 3, v{B+1}
    v_sub_u32 v{B+2}, v{B}, v{B+2}
    v_mov_b32 v{B+3}, 0x3f80
    v_mov_b32 v{B+4}, 0x3f800000
    v_mov_b32 v{B+6}, 0
    """)
    for w in range(2):
        for r in range(4):
            txt = f"""
            v_cmp_eq_u32 vcc, {16*w + 2*r}, v{B+2}
            v_cmp_eq_u32 s[{S_EX}:{S_EX+1}], {16*w + 2*r + 1}, v{B+2}
            s_nop 1
            v_cndmask_b32 v{B+5}, v{B+6}, v{B+3}, vcc
            v_cndmask_b32 v{B+5}, v{B+5}, v{B+4}, s[{S_EX}:{S_EX+1}]
            v_accvgpr_write_b32 a{A_ID[w]+r}, v{B+5}
            """
            a.atomic(txt) if isinstance(a, Rec) else a(txt)
    for i in range(4):
        a(f"v_accvgpr_write_b32 a{A_Z+i}, 0")
    a(f"""
    v_bfe_u32 v{B+3}, v{B}, 1, 3
    v_xor_b32 v{B+3}, v{B+3}, v{B+1}
    v_lshlrev_b32 v{B+4}, 7, v{B}
    s_lshl_b32 s{S_T0}, s{S_W}, 12
    v_add_u32 v{B+4}, s{S_T0}, v{B+4}
    """)
    for b in range(2):
        for w in range(2):
            a(f"v_xor_b32 v{B+5}, {4*b + 2*w}, v{B+3}\nv_lshl_add_u32 v{V_AGA + 2*b + w}, v{B+5}, 4, v{B+4}")

def zero_ms(a):
    for i in range(8):
        a(f"v_mov_b32 v{V_M+i}, 0\nv_accvgpr_write_b32 a{A_S+i}, 0")

def zero_acc_txt(b):
    d = V_ACC[b]
    return f"{M32} v[{d}:{d+15}], a[{A_Z}:{A_Z+3}], a[{A_Z}:{A_Z+3}], 0"

def wf_load(a, which, f, slot):
    a(f"s_add_u32 s{S_T2}, s{S_WFO}, {which*131072 + (f >> 2)*4096}")
    d = A_WF + slot*4
    return a.vm(f"buffer_load_dwordx4 a[{d}:{d+3}], v{V_L16}, s[{SRD_WF}:{SRD_WF+3}], s{S_T2} offen offset:{(f & 3)*1024}")

def w1_seq():
    return [(0, b*16 + s, s*2 + b) for s in range(16) for b in range(2)]
def wh_seq(which):
    return [(which, mb*8 + s, s*4 + mb) for s in range(8) for mb in range(4)]

def gemm_stream(a, mg, seq, pos, t_w):
    VA, VH = 190, 198
    PD = int(os.environ.get('PD', 12))
    def prefetch(upto):
        while pos[0] < min(upto, len(seq)):
            w, f, s = seq[pos[0]]
            t_w[pos[0]] = wf_load(a, w, f, s)
            pos[0] += 1
    BUF = [176, 184]
    def issue_a(s):
        tok = None
        for mb in range(2):
            d = BUF[s & 1] + 4*mb
            tok = a.ds(f"ds_read_b128 a[{d}:{d+3}], v{VA + (s & 7)} offset:{mb*16384 + (s >> 3)*256}")
        return tok
    tok = issue_a(0)
    for s in range(16):
        a.wait(tok, t_w[2*s + 1])
        if s < 15:
            tok = issue_a(s + 1)
        for b in range(2):
            for mb in range(2):
                d = V_AP[(mb, b)]; x = BUF[s & 1] + 4*mb; w = A_WF + (s*2 + b)*4
                c = "0" if s == 0 else f"v[{d}:{d+15}]"
                a(f"{M32} v[{d}:{d+15}], a[{x}:{x+3}], a[{w}:{w+3}], {c}")
                if mb == 0:
                    prefetch(2*s + b + 1 + PD)
                mg.step(int(os.environ.get('BA', 4)))
    a.stamp(3)
    BUF = [176, 188]
    def issue_h(s):
        tok = None
        for nb in range(3):
            d = BUF[s & 1] + 4*nb
            tok = a.ds(f"ds_read_b128 a[{d}:{d+3}], v{VH + (s & 3)} offset:{nb*8192 + (s >> 2)*256}")
        return tok
    tok = issue_h(0)
    for s in range(8):
        a.wait(tok, t_w[32 + 4*s + 3])
        if s < 7:
            tok = issue_h(s + 1)
        k = 0
        for nb in range(3):
            for mb in range(4):
                d = A_H1 + (nb*4 + mb)*4; x = BUF[s & 1] + 4*nb; w = A_WF + (s*4 + mb)*4
                c = "0" if s == 0 else f"a[{d}:{d+3}]"
                a(f"{M16} a[{d}:{d+3}], a[{w}:{w+3}], a[{x}:{x+3}], {c}")
                k += 1
                if k % 3 == 0:
                    prefetch(32 + 4*s + k//3 + PD)
                mg.step(int(os.environ.get('BH', 3)))

def gemm_addrs(a, B):
    VA, VH = 190, 198
    a(f"""
    v_and_b32 v{B}, 31, v{V_LANE}
    v_lshrrev_b32 v{B+1}, 5, v{V_LANE}
    v_and_b32 v{B+2}, 15, v{V_LANE}
    v_xor_b32 v{B+1}, v{B+1}, v{B+2}
    v_lshlrev_b32 v{B}, 9, v{B}
    v_add_u32 v{B}, {L_HT}, v{B}
    """)
    for k in range(8):
        a(f"v_xor_b32 v{B+3}, {2*k}, v{B+1}\nv_lshl_add_u32 v{VA+k}, v{B+3}, 4, v{B}")
    a(f"""
    v_lshrrev_b32 v{B+1}, 4, v{V_LANE}
    v_xor_b32 v{B+1}, v{B+1}, v{B+2}
    v_lshlrev_b32 v{B}, 9, v{B+2}
    v_add_u32 v{B}, {L_HT}, v{B}
    """)
    for k in range(4):
        a(f"v_xor_b32 v{B+3}, {4*k}, v{B+1}\nv_lshl_add_u32 v{VH+k}, v{B+3}, 4, v{B}")

def residual_reads(a, B):
    a(f"""
    v_and_b32 v{B}, 15, v{V_LANE}
    v_lshrrev_b32 v{B+1}, 5, v{V_LANE}
    s_lshl_b32 s{S_T0}, s{S_W}, 3
    v_add_u32 v{B+1}, s{S_T0}, v{B+1}
    v_bfe_u32 v{B+2}, v{V_LANE}, 4, 1
    v_lshlrev_b32 v{B+2}, 3, v{B+2}
    v_lshl_add_u32 v{B+2}, v{B}, 9, v{B+2}
    v_add_u32 v{B+2}, {L_HT}, v{B+2}
    """)
    tok = None
    for mb in range(4):
        a(f"""
        v_add_u32 v{B+3}, {2*mb}, v{B+1}
        v_xor_b32 v{B+3}, v{B+3}, v{B}
        v_lshl_add_u32 v{B+4+mb}, v{B+3}, 4, v{B+2}
        """)
        for nb in range(3):
            d = A_HR + (nb*4 + mb)*2
            tok = a.ds(f"ds_read_b64 a[{d}:{d+1}], v{B+4+mb} offset:{nb*8192}")
    return tok

def ga_txt(b, w, slot):
    d = A_GA[b] + 4*w
    return f"ds_read_b128 a[{d}:{d+3}], v{V_AGA + 2*b + w} offset:{slot*16384}"
def s2m(b, q):
    d = V_ACC[b]
    return f"{M32} v[{d}:{d+15}], v[{V_M+4*q}:{V_M+4*q+3}], a[{A_S+4*q}:{A_S+4*q+3}], v[{d}:{d+15}]"
def s1m(b, k):
    T = V_T[b]
    if k == 0: return f"{M32} v[{T}:{T+15}], a[{A_GA[b]}:{A_GA[b]+3}], a[{A_ID[0]}:{A_ID[0]+3}], 0"
    if k == 1: return f"{M32} v[{T}:{T+15}], a[{A_GA[b]+4}:{A_GA[b]+7}], a[{A_ID[1]}:{A_ID[1]+3}], v[{T}:{T+15}]"
    return f"{M32} v[{T}:{T+15}], a[{A_X}:{A_X+3}], v[{V_Y[b]}:{V_Y[b]+3}], v[{T}:{T+15}]"

def pipeline_fill(a):
    a("s_waitcnt vmcnt(12)")
    a.ds(ga_txt(0, 0, 0)); a.ds(ga_txt(0, 1, 0))
    a.ds(f"ds_read_b128 a[{A_X}:{A_X+3}], v{V_AXS}")
    a.wait_all(vm=False)
    a(s1m(0, 0)); a(s1m(0, 1)); a(s1m(0, 2))
    a.ds(f"ds_read_b128 v[{V_SRCV}:{V_SRCV+3}], v{V_ASRC} offset:{4*128}")
    a.ds(ga_txt(1, 0, 0)); a.ds(ga_txt(1, 1, 0))
    a("s_nop 15")

def exps(b, lo, hi):
    return "\n".join(f"v_exp_f32 v{V_E+i}, v{V_T[b]+i}" for i in range(lo, hi))

def w2(a, b):
    for i in range(8):
        a(f"v_pk_add_f32 v[{V_E+2*i}:{V_E+2*i+1}], v[{V_E+2*i}:{V_E+2*i+1}], 1.0")
    for i in range(16):
        a(f"v_rcp_f32 v{V_E+i}, v{V_E+i}")
    for i in range(8):
        a(f"v_pk_mul_f32 v[{V_E+2*i}:{V_E+2*i+1}], v[{V_E+2*i}:{V_E+2*i+1}], v[{V_T[b]+2*i}:{V_T[b]+2*i+1}]")
    for i in range(8):
        a(f"v_cvt_pk_bf16_f32 v{V_M+i}, v{V_E+2*i}, v{V_E+2*i+1}")

def edge_loop(a):
    stubs = []
    a.label("L_loop")
    for u in range(4):
        nx = (u + 1) & 3
        a(s2m(1, 0)); a("s_waitcnt vmcnt(8)")
        a(exps(0, 0, 3))
        a(s2m(1, 1)); a("s_waitcnt lgkmcnt(0)")
        a(ga_txt(0, 0, nx))
        a(exps(0, 3, 6))
        a(s1m(1, 0))
        a(ga_txt(0, 1, nx))
        a(exps(0, 6, 9))
        a(s1m(1, 1)); a(f"s_and_b32 s{S_T0}, s{S_FM}, 3")
        a(f"ds_read_b128 a[{A_S}:{A_S+3}], v{V_AXS} offset:{u*3072 + 1024}")
        a(exps(0, 9, 12))
        a(s1m(1, 2))
        a(f"ds_read_b128 a[{A_S+4}:{A_S+7}], v{V_AXS} offset:{u*3072 + 2048}")
        a(f"ds_read_b128 a[{A_X}:{A_X+3}], v{V_AXS} offset:{(u+1)*3072}")
        a(exps(0, 12, 16))
        w2(a, 0)
        a(f"s_cbranch_scc1 L_stubA{u}")
        a.label(f"L_retA{u}")
        stubs.append((f"L_stubA{u}", "L_handlerA", f"L_retA{u}"))
        a("s_waitcnt lgkmcnt(0)")
        a(s2m(0, 0)); a(f"s_mov_b32 m0, s{S_M0+u}")
        a(exps(1, 0, 3))
        for i in range(4):
            a(f"v_add_u32 v{V_DA+i}, v{V_SRCV+i}, v{V_COL+i}")
        a(s2m(0, 1))
        a(f"ds_read_b128 v[{V_SRCV}:{V_SRCV+3}], v{V_ASRC} offset:{(u+5)*128}")
        a(exps(1, 3, 6))
        a(s1m(0, 0))
        a(ga_txt(1, 0, nx))
        a(exps(1, 6, 9))
        a(s1m(0, 1)); a(f"s_bitcmp1_b32 s{S_FM}, 1")
        a(ga_txt(1, 1, nx))
        a(exps(1, 9, 12))
        a(s1m(0, 2))
        for i in range(4):
            a(f"buffer_load_dwordx4 v{V_DA+i}, s[{SRD_BT}:{SRD_BT+3}], s{S_WOFF} offen offset:{i*1024} lds")
        a(exps(1, 12, 16))
        w2(a, 1)
        a(f"s_cbranch_scc1 L_stubB{u}")
        a.label(f"L_retB{u}")
        stubs.append((f"L_stubB{u}", "L_handlerB", f"L_retB{u}"))
        a(f"s_lshr_b32 s{S_FM}, s{S_FM}, 1\ns_cmp_eq_u32 s{S_FM}, 1\ns_cbranch_scc1 L_loop_done")
    a(f"v_add_u32 v{V_AXS}, {4*3072}, v{V_AXS}\nv_add_u32 v{V_ASRC}, {4*128}, v{V_ASRC}\ns_branch L_loop")
    for st, h, ret in stubs:
        a.label(st)
        a(f"s_call_b64 s[{S_RET}:{S_RET+1}], {h}\ns_branch {ret}")

def acc_from_mp_indexed(a, b, sidx):
    a(f"s_set_gpr_idx_on s{sidx}, gpr_idx(SRC1)")
    for p in range(8):
        a(f"v_lshlrev_b32 v{V_ACC[b]+2*p}, 16, v{MP(0, b)+p}\nv_and_b32 v{V_ACC[b]+2*p+1}, s{S_HI}, v{MP(0, b)+p}")
    a("s_set_gpr_idx_off")

def flush_indexed(a, b, sidx, tag):
    a(f"s_set_gpr_idx_on s{sidx}, gpr_idx(DST)")
    for p in range(8):
        a(f"v_cvt_pk_bf16_f32 v{MP(0, b)+p}, v{V_ACC[b]+2*p}, v{V_ACC[b]+2*p+1}")
    a(f"s_set_gpr_idx_off\ns_add_u32 s{sidx}, s{sidx}, 16\ns_cmp_lg_u32 s{S_SLOW}, 0\ns_cbranch_scc1 L_h{tag}_slow")
    a(zero_acc_txt(b))

def handlers(a):
    ret = f"s_setpc_b64 s[{S_RET}:{S_RET+1}]"
    a.label("L_handlerA")
    a(f"s_bitcmp1_b32 s{S_FM}, 1\ns_cbranch_scc0 L_hA_flush")
    a(f"s_add_u32 s{S_GY}, s{S_GY}, 8\ns_set_gpr_idx_on s{S_GY}, gpr_idx(SRC0)")
    for i in range(8):
        a(f"v_mov_b32 v{V_Y[0]+i}, v{V_YS+i}")
    a("s_set_gpr_idx_off")
    a.label("L_hA_flush")
    a(f"s_bitcmp1_b32 s{S_FM}, 0\ns_cbranch_scc0 L_hA_ret")
    flush_indexed(a, 1, S_G1, "A")
    a.label("L_hA_ret")
    a(ret)
    a.label("L_handlerB")
    flush_indexed(a, 0, S_G0, "B")
    a(ret)
    a.label("L_hA_slow")
    acc_from_mp_indexed(a, 1, S_G1)
    a(ret)
    a.label("L_hB_slow")
    acc_from_mp_indexed(a, 0, S_G0)
    a(ret)

def slow_path(a):
    c = SLOW
    a.label("L_slow_start")
    for i in range(80):
        a(f"v_mov_b32 v{V_MP+i}, 0")
    a(f"s_mov_b32 s{S_BASE}, 0")
    a.label("L_slow_pass")
    a.n = {"vm": 0, "lgkm": 0}; a.done = {"vm": 0, "lgkm": 0}
    a(f"s_sub_u32 s{S_NWIN}, s{S_N}, s{S_BASE}\ns_min_u32 s{S_NWIN}, s{S_NWIN}, {SLOW_CAP}")
    a("s_waitcnt vmcnt(0) lgkmcnt(0)\ns_barrier")
    lds_small_init(a, c.tb)
    lds_zero_xs(a, c.tb)
    desc_window(a, SLOW_CAP, c.tb)
    a("s_barrier")
    t_rec = rec_loads(a, c)
    t_pos = rank_phase(a, c, t_rec)
    a.wait_all(vm=False)
    a("s_barrier")
    group_bases(a, c)
    positions(a, c)
    a.wait_all(vm=False)
    a("s_barrier")
    addr_reset(a)
    for t in range(4):
        dma_tile(a, t)
    build_xs(a, c, t_pos)
    a.wait_all(vm=False)
    a("s_barrier")
    zero_ms(a)
    for i in range(8):
        a(f"v_mov_b32 v{V_Y[0]+i}, v{V_YS+i}")
    a(f"s_mov_b32 s{S_GY}, 0\ns_mov_b32 s{S_G0}, 0\ns_mov_b32 s{S_G1}, 0")
    acc_from_mp_indexed(a, 0, S_G0)
    acc_from_mp_indexed(a, 1, S_G1)
    a("s_branch L_fill")
    a.label("L_slow_next")
    a(f"s_add_u32 s{S_BASE}, s{S_BASE}, {SLOW_CAP}\ns_cmp_lt_u32 s{S_BASE}, s{S_N}\ns_cbranch_scc1 L_slow_pass\ns_branch L_tail")

def tail(a):
    a.label("L_loop_done")
    a.n = {"vm": 0, "lgkm": 0}; a.done = {"vm": 0, "lgkm": 0}
    a(s2m(1, 0)); a(s2m(1, 1))
    a("s_waitcnt lgkmcnt(0)")
    a.cstamp(13); a.stamp(9)
    a("s_nop 15\ns_nop 7")
    for p in range(8):
        a(f"v_cvt_pk_bf16_f32 v{MP(4, 1)+p}, v{V_ACC[1]+2*p}, v{V_ACC[1]+2*p+1}")
    a(f"s_cmp_lg_u32 s{S_SLOW}, 0\ns_cbranch_scc1 L_slow_next")
    a.label("L_tail")
    seq = wh_seq(2)
    t_w = {}
    pos = [0]
    def prefetch(n):
        for _ in range(n):
            if pos[0] < 32:
                w, f, s = seq[pos[0]]
                t_w[pos[0]] = wf_load(a, w, f, s); pos[0] += 1
    prefetch(8)
    a("s_waitcnt vmcnt(8)")
    a("s_barrier")
    L = V_LANE; B = 0
    a(f"""
    v_bfe_u32 v{B}, v{L}, 2, 3
    v_mul_u32_u24 v{B}, {MT_STRIDE}, v{B}
    v_lshrrev_b32 v{B+1}, 5, v{L}
    v_lshl_add_u32 v{B}, v{B+1}, 3, v{B}
    s_lshl_b32 s{S_T0}, s{S_W}, 7
    v_add_u32 v{B}, s{S_T0}, v{B}
    v_and_b32 v{B+1}, 3, v{L}
    v_cmp_eq_u32 s[{S_EX}:{S_EX+1}], 0, v{B+1}
    s_nop 3
    """)
    for g in range(5):
        lines = [f"ds_write_b64 v{B}, v[{MP(g, b)+2*t}:{MP(g, b)+2*t+1}] offset:{L_MT + g*8*MT_STRIDE + b*64 + t*16}" for b in range(2) for t in range(4)]
        masked_ds(a, f"s[{S_EX}:{S_EX+1}]", lines)
        prefetch(2)
    VA = 4
    a(f"""
    v_and_b32 v{VA}, 15, v{L}
    v_mul_u32_u24 v{VA}, {MT_STRIDE}, v{VA}
    v_lshrrev_b32 v{VA+1}, 4, v{L}
    v_lshl_add_u32 v{VA}, v{VA+1}, 4, v{VA}
    """)
    WXV = 80
    for i in range(16):
        a(f"v_accvgpr_read_b32 v{WXV+i}, a{A_WX+i}")
    a.wait_all(vm=False)
    a("s_barrier")
    ACC2 = 8
    BUF = [176, 188]
    PD = 96
    for g in range(5):
        a(f"v_mov_b32 v{PD+g}, 0")
    dots = [f"v_dot2c_f32_bf16 v{PD+g}, v{MP(g, b)+p}, v{WXV + b*8 + p}" for g in range(5) for b in range(2) for p in range(8)]
    def issue(s):
        tok = None
        for nb in range(3):
            d = BUF[s & 1] + 4*nb
            tok = a.ds(f"ds_read_b128 a[{d}:{d+3}], v{VA} offset:{L_MT + nb*16*MT_STRIDE + s*64}")
        return tok
    tok = issue(0)
    di = 0
    for s in range(8):
        a.wait(tok, t_w[4*s + 3])
        if s < 7:
            tok = issue(s + 1)
        k = 0
        for nb in range(3):
            for mb in range(4):
                d = ACC2 + (nb*4 + mb)*4; x = BUF[s & 1] + 4*nb; w = A_WF + (s*4 + mb)*4
                cc = "0" if s == 0 else f"v[{d}:{d+3}]"
                a(f"{M16} v[{d}:{d+3}], a[{w}:{w+3}], a[{x}:{x+3}], {cc}")
                k += 1
                if k % 4 == 0:
                    prefetch(1)
                if di < len(dots):
                    a(dots[di]); di += 1
    while di < len(dots):
        a(dots[di]); di += 1
    a.stamp(10)
    a(f"""
    v_lshlrev_b32 v{VA}, 2, v{L}
    s_mul_i32 s{S_T0}, s{S_W}, {5*256}
    v_add_u32 v{VA}, s{S_T0}, v{VA}
    s_nop 2
    """)
    for g in range(5):
        a.ds(f"ds_write_b32 v{VA}, v{PD+g} offset:{L_PP + g*256}")
    H1V = 160; HRV = 208
    for i in range(48):
        a(f"v_accvgpr_read_b32 v{H1V+i}, a{A_H1+i}")
    for i in range(24):
        a(f"v_accvgpr_read_b32 v{HRV+i}, a{A_HR+i}")
    a.wait_all(vm=False)
    a("s_barrier")
    a(f"s_cmp_ge_u32 s{S_W}, 2\ns_cbranch_scc1 L_pos_done")
    a.srd(SRD_TMP, S_WS, WS_POSP, N*8)
    a(f"s_mul_i32 s{S_T0}, s2, {NPB*6}\ns_add_u32 s{S_T0}, s{S_T0}, {N*512}")
    a.srd(SRD_R4, S_OUT, f"s{S_T0}", NPB*6)
    P = 64
    a(f"""
    v_mul_u32_u24 v{P}, 21846, v{V_TID}
    v_lshrrev_b32 v{P}, 16, v{P}
    v_mul_u32_u24 v{P+1}, 3, v{P}
    v_sub_u32 v{P+1}, v{V_TID}, v{P+1}
    v_add_u32 v{P+2}, s{S_NODE0}, v{P}
    v_lshlrev_b32 v{P+2}, 3, v{P+2}
    v_lshl_add_u32 v{P+2}, v{P+1}, 1, v{P+2}
    """)
    tp = a.vm(f"buffer_load_ushort v{P+3}, v{P+2}, s[{SRD_TMP}:{SRD_TMP+3}], 0 offen")
    a(f"""
    v_lshrrev_b32 v{P+4}, 3, v{P}
    v_min_u32 v{P+4}, 4, v{P+4}
    v_and_b32 v{P+5}, 7, v{P}
    v_lshlrev_b32 v{P+5}, 2, v{P+5}
    v_add3_u32 v{P+5}, v{P+5}, v{P+1}, 1
    v_lshlrev_b32 v{P+5}, 2, v{P+5}
    v_lshl_add_u32 v{P+5}, v{P+4}, 8, v{P+5}
    v_add_u32 v{P+5}, {L_PP}, v{P+5}
    """)
    tk = None
    for w in range(4):
        for h in range(2):
            tk = a.ds(f"ds_read_b32 v{P+6+2*w+h}, v{P+5} offset:{w*5*256 + h*128}")
    a.wait(tk)
    for k in range(1, 8):
        a(f"v_add_f32 v{P+6}, v{P+6}, v{P+6+k}")
    a.wait(tp)
    a(f"""
    v_lshlrev_b32 v{P+3}, 16, v{P+3}
    s_mov_b32 s{S_T0}, {hex(NEG_LN2)}
    v_fmac_f32 v{P+3}, s{S_T0}, v{P+6}
    v_cvt_pk_bf16_f32 v{P+3}, v{P+3}, v{P+3}
    v_lshlrev_b32 v{P+4}, 1, v{V_TID}
    """)
    a.vm(f"buffer_store_short v{P+3}, v{P+4}, s[{SRD_R4}:{SRD_R4+3}], 0 offen")
    a.label("L_pos_done")
    a(f"s_mul_i32 s{S_T0}, s2, {NPB*512}")
    a.srd(SRD_OUT, S_OUT, f"s{S_T0}", NPB*512)
    a(f"""
    s_mov_b32 s{S_K}, {hex(NEG_LOG2E)}
    s_mov_b32 s{S_K+1}, s{S_K}
    s_mov_b32 s{S_K+2}, {hex(NEG_LN2)}
    s_mov_b32 s{S_K+3}, s{S_K+2}
    v_and_b32 v{VA}, 15, v{L}
    v_lshrrev_b32 v{VA+1}, 4, v{L}
    v_and_b32 v{VA+2}, 1, v{VA+1}
    v_lshlrev_b32 v{VA+2}, 5, v{VA+2}
    v_lshrrev_b32 v{VA+1}, 1, v{VA+1}
    v_lshl_add_u32 v{VA+2}, v{VA+1}, 4, v{VA+2}
    v_lshl_add_u32 v{VA}, v{VA}, 9, v{VA+2}
    s_lshl_b32 s{S_T0}, s{S_W}, 7
    v_add_u32 v{VA}, s{S_T0}, v{VA}
    """)
    EE = 56
    for nb in range(3):
        for mp in range(2):
            O = 96 + 4*((nb*2 + mp) & 1)
            for mi in range(2):
                mb = 2*mp + mi
                t = ACC2 + (nb*4 + mb)*4; h1 = H1V + (nb*4 + mb)*4; hr = HRV + (nb*4 + mb)*2
                e = EE + 4*mi; hh = EE + 8 + 4*mi
                a(f"""
                v_pk_fma_f32 v[{t}:{t+1}], v[{h1}:{h1+1}], s[{S_K}:{S_K+1}], v[{t}:{t+1}]
                v_pk_fma_f32 v[{t+2}:{t+3}], v[{h1+2}:{h1+3}], s[{S_K}:{S_K+1}], v[{t+2}:{t+3}]
                v_lshlrev_b32 v{hh}, 16, v{hr}
                v_and_b32 v{hh+1}, s{S_HI}, v{hr}
                v_exp_f32 v{e}, v{t}
                v_exp_f32 v{e+1}, v{t+1}
                v_exp_f32 v{e+2}, v{t+2}
                v_exp_f32 v{e+3}, v{t+3}
                v_lshlrev_b32 v{hh+2}, 16, v{hr+1}
                v_and_b32 v{hh+3}, s{S_HI}, v{hr+1}
                v_pk_add_f32 v[{e}:{e+1}], v[{e}:{e+1}], 1.0
                v_pk_add_f32 v[{e+2}:{e+3}], v[{e+2}:{e+3}], 1.0
                v_rcp_f32 v{e}, v{e}
                v_rcp_f32 v{e+1}, v{e+1}
                v_rcp_f32 v{e+2}, v{e+2}
                v_rcp_f32 v{e+3}, v{e+3}
                v_pk_mul_f32 v[{t}:{t+1}], v[{t}:{t+1}], s[{S_K+2}:{S_K+3}]
                v_pk_mul_f32 v[{t+2}:{t+3}], v[{t+2}:{t+3}], s[{S_K+2}:{S_K+3}]
                v_pk_fma_f32 v[{e}:{e+1}], v[{e}:{e+1}], v[{t}:{t+1}], v[{hh}:{hh+1}]
                v_pk_fma_f32 v[{e+2}:{e+3}], v[{e+2}:{e+3}], v[{t+2}:{t+3}], v[{hh+2}:{hh+3}]
                v_cvt_pk_bf16_f32 v{O+2*mi}, v{e}, v{e+1}
                v_cvt_pk_bf16_f32 v{O+2*mi+1}, v{e+2}, v{e+3}
                """)
            a(f"""
            s_nop 1
            v_permlane16_swap_b32 v{O}, v{O+2}
            v_permlane16_swap_b32 v{O+1}, v{O+3}
            s_movk_i32 s{S_T2}, {nb*8192}
            """)
            a.vm(f"buffer_store_dwordx4 v[{O}:{O+3}], v{VA}, s[{SRD_OUT}:{SRD_OUT+3}], s{S_T2} offen offset:{mp*64}")
    if STAMP[0]:
        a("s_waitcnt vmcnt(0)")
    a.stamp(11)
    a(f"s_mov_b32 s100, s{S_NT}") if STAMP[0] else None
    a.stamp_flush(S_WS, 0x810000, 15, S_W, 0)
    a("s_endpgm")

def main_kernel(name):
    a = Asm()
    c = FAST
    a.raw(f".globl {name}\n.p2align 8\n.type {name},@function\n{name}:")
    a.stamp(0)
    a(f"""
    s_cmp_ge_u32 s2, {NB}
    s_cbranch_scc1 L_main_exit
    s_load_dwordx2 s[{S_H}:{S_H+1}], s[0:1], 0
    s_load_dwordx2 s[{S_WX}:{S_WX+1}], s[0:1], 48
    s_load_dwordx2 s[{S_OUT}:{S_OUT+1}], s[0:1], 64
    s_load_dwordx2 s[{S_WS}:{S_WS+1}], s[0:1], 80
    v_mov_b32 v{V_TID}, v0
    v_and_b32 v{V_LANE}, 63, v0
    v_lshrrev_b32 v1, 6, v0
    s_mul_i32 s{S_NODE0}, s2, {NPB}
    v_readfirstlane_b32 s{S_W}, v1
    v_lshlrev_b32 v{V_L16}, 4, v{V_LANE}
    v_lshlrev_b32 v1, 2, v{V_LANE}
    v_lshrrev_b32 v3, 5, v{V_LANE}
    v_and_b32 v5, 31, v{V_LANE}
    s_lshl_b32 s{S_T0}, s{S_W}, 1
    v_add_u32 v4, s{S_T0}, v3
    v_xor_b32 v4, v4, v5
    v_lshlrev_b32 v4, 4, v4
    v_lshl_add_u32 v4, v3, 9, v4
    v_xor_b32 v5, 0x80, v4
    s_lshl_b32 s{S_WFO}, s{S_W}, 15
    s_mov_b32 s{S_HI}, 0xffff0000
    s_mov_b32 s{S_K}, {hex(NEG_LOG2E)}
    s_mov_b32 s{S_SLOW}, 0
    s_mov_b32 s{S_BASE}, 0
    s_lshl_b32 s{S_T0}, s2, 8
    s_add_u32 s{S_T0}, s{S_T0}, {WS_OFFS}
    s_mul_i32 s{S_T1}, s2, {NPB*512}
    s_waitcnt lgkmcnt(0)
    """)
    a.srd(SRD_TMP, S_WS, f"s{S_T0}", G*4)
    t_offs = a.vm(f"buffer_load_dword v2, v1, s[{SRD_TMP}:{SRD_TMP+3}], 0 offen")
    a.srd(SRD_H, S_H, f"s{S_T1}", NPB*512)
    a(f"s_lshl_b32 s{S_T0}, s{S_W}, 10\ns_add_u32 s{S_T1}, s{S_T0}, {L_HT}")
    for u in range(5):
        a(f"s_add_u32 m0, s{S_T1}, {u*4096}\ns_add_u32 s{S_T2}, s{S_T0}, {u*4096}")
        t_h = a.vm(f"buffer_load_dwordx4 v{4 + (u & 1)}, s[{SRD_H}:{SRD_H+3}], s{S_T2} offen lds")
    a.srd(SRD_WF, S_WS, WS_W1F, 3*131072)
    seq = w1_seq() + wh_seq(1)
    t_w = {}
    pos = [0]
    for k in range(10):
        w, f, s = seq[k]; t_w[k] = wf_load(a, w, f, s); pos[0] += 1
    a.srd(SRD_R4, S_WS, WS_REC4, E*4)
    a.srd(SRD_R8, S_WS, WS_REC8, E*8)
    a.srd(SRD_PP, S_WS, WS_POSP, N*8)
    a.srd(SRD_BT, S_WS, WS_BT - 3072, N*512 + 3072)
    lds_small_init(a, 8)
    gemm_addrs(a, 8)
    a.wait(t_offs)
    a.stamp(1)
    scan_offs(a, 2, 8)
    a(f"""
    s_nop 1
    s_cmp_gt_u32 s{S_N}, {FAST_CAP}
    s_cselect_b32 s{S_SLOW}, 1, 0
    s_cselect_b32 s{S_NWIN}, 0, s{S_N}
    """)
    desc_window(a, f"s{S_NWIN}", 8)
    a.wait(t_h)
    a("s_barrier")
    a.stamp(2)
    r = Rec()
    t_rec = rec_loads(r, c)
    lds_zero_xs(r, c.tb + 17)
    r.srd(SRD_TMP, S_WS, WS_WXF, 4096)
    r(f"v_lshlrev_b32 v{c.tb}, 3, v{V_LANE}\ns_lshl_b32 s{S_T0}, s{S_W}, 10")
    for b in range(2):
        t_wx = r.vm(f"buffer_load_dwordx2 v[{V_WX+2*b}:{V_WX+2*b+1}], v{c.tb}, s[{SRD_TMP}:{SRD_TMP+3}], s{S_T0} offen offset:{b*512}")
    r.at(22)
    t_pos = rank_phase(r, c, t_rec)
    dma_consts(r, c.tb + 8)
    addr_reset(r)
    r.wait_all(vm=False)
    r("s_barrier")
    group_bases(r, c)
    positions(r, c)
    r.wait_all(vm=False)
    r("s_barrier")
    r.stamp(4)
    dma_tile(r, 0); dma_tile(r, 1)
    r.srd(SRD_OUT, S_WX, 0, 512)
    r(f"v_lshrrev_b32 v{c.tb}, 5, v{V_LANE}\nv_lshlrev_b32 v{c.tb}, 3, v{c.tb}\ns_lshl_b32 s{S_T0}, s{S_W}, 7")
    for b in range(2):
        for u in range(2):
            for t in range(2):
                d = A_WX + (b*2 + u)*4 + 2*t
                r.vm(f"buffer_load_dwordx2 a[{d}:{d+1}], v{c.tb}, s[{SRD_OUT}:{SRD_OUT+3}], s{S_T0} offen offset:{b*64 + u*32 + t*16}")
    build_xs(r, c, t_pos)
    loop_consts(r, c.tb)
    r.at(64 + 8)
    r.wait(t_wx)
    y_prep(r)
    mg = Merger(a, r)
    if 'noB' in EXP:
        mg.step = lambda budget: None
    gemm_stream(a, mg, seq, pos, t_w)
    a.stamp(5)
    mg.drain()
    a.stamp(6)
    tok = residual_reads(a, c.tb)
    a.wait_all(vm=False)
    a("s_barrier")
    a.stamp(7)
    a(f"s_cmp_lg_u32 s{S_SLOW}, 0\ns_cbranch_scc1 L_slow_start")
    dma_tile(a, 2); dma_tile(a, 3)
    zero_ms(a)
    a(f"""
    s_mov_b32 s{S_T3}, s{S_FM}
    s_mov_b32 s{S_FM}, 3
    s_mov_b32 s{S_GY}, -8
    s_mov_b32 s{S_G0}, 0
    s_mov_b32 s{S_G1}, 0
    s_call_b64 s[{S_RET}:{S_RET+1}], L_handlerA
    s_call_b64 s[{S_RET}:{S_RET+1}], L_handlerB
    s_mov_b32 s{S_FM}, s{S_T3}
    s_mov_b32 s{S_G0}, 0
    s_mov_b32 s{S_G1}, 0
    """)
    a.label("L_fill")
    a.n = {"vm": 0, "lgkm": 0}; a.done = {"vm": 0, "lgkm": 0}
    if STAMP[0]:
        a(f"s_flbit_i32_b32 s{S_NT}, s{S_FM}\ns_sub_u32 s{S_NT}, 31, s{S_NT}")
    pipeline_fill(a)
    a.stamp(8); a.cstamp(12)
    edge_loop(a)
    handlers(a)
    slow_path(a)
    tail(a)
    a.label("L_main_exit")
    a("s_endpgm")
    return a.text()

if __name__ == "__main__":
    t = main_kernel("main_kernel"); print(len(t.splitlines()), MAIN_LDS)
```

```python
from asmlib import *
from asmlib import STAMP
from layout import *

N_SORT, N_REF, N_GEMM = 50, 6, 200
PREP_LDS = 131072
PREP_GRID = N_SORT + N_REF + N_GEMM

S_H, S_POS, S_EA, S_SRC, S_DST, S_WE, S_WX, S_WH, S_WS = 4, 6, 8, 10, 12, 14, 16, 18, 20
S_WAVE = 22
SRD_A, SRD_B, SRD_C, SRD_D, SRD_E = 24, 28, 32, 36, 40

def w_slice_dma(a, srd, s_ch):
    a(f"""
    v_lshrrev_b32 v2, 4, v1
    v_bfe_u32 v3, v1, 1, 3
    v_xor_b32 v3, v3, v2
    v_lshlrev_b32 v3, 5, v3
    v_lshl_add_u32 v3, v2, 9, v3
    v_and_b32 v4, 1, v1
    v_lshl_add_u32 v3, v4, 4, v3
    v_xor_b32 v4, 0x80, v3
    s_lshl_b32 s44, s{S_WAVE}, 14
    s_lshl_b32 s45, s{s_ch}, 8
    s_add_u32 s44, s44, s45
    s_lshl_b32 s45, s{S_WAVE}, 13
    """)
    toks = []
    for u in range(8):
        z = (u >> 1) & 1
        a(f"s_add_u32 m0, s45, {u*1024}")
        if u:
            a(f"s_add_u32 s44, s44, 2048")
        else:
            a("s_nop 0")
        toks.append(a.vm(f"buffer_load_dwordx4 v{3+z}, s[{srd}:{srd+3}], s44 offen lds"))
    return toks

def tr_addr_16(a, dst, seg_s, seg_add):
    a(f"""
    v_lshrrev_b32 v10, 4, v1
    v_bfe_u32 v11, v1, 2, 2
    v_and_b32 v12, 1, v10
    v_lshl_or_b32 v12, v12, 2, v11
    s_add_u32 s46, s{seg_s}, {seg_add}
    v_xor_b32 v12, s46, v12
    v_lshlrev_b32 v12, 5, v12
    v_lshl_add_u32 v13, v10, 3, v11
    v_lshl_add_u32 v12, v13, 8, v12
    v_and_b32 v13, 3, v1
    v_lshl_add_u32 v{dst}, v13, 3, v12
    """)

def gemm_role(a):
    a.comment("---- B' = -log2e * (h @ W2): 100 rows x 128 columns per workgroup")
    a(f"""
    s_sub_u32 s3, s2, {N_SORT + N_REF}
    s_lshr_b32 s48, s3, 1
    s_and_b32 s49, s3, 1
    s_mul_i32 s50, s48, {100*512}
    """)
    a.srd(SRD_A, S_WE, 256*512, 256*512)
    a.srd(SRD_B, S_H, 0, N*512)
    a(f"s_add_u32 s51, s50, {WS_BT}")
    a.srd(SRD_C, S_WS, "s51", 100*512)
    w_slice_dma(a, SRD_A, 49)
    a(f"""
    v_lshrrev_b32 v5, 5, v1
    s_lshl_b32 s46, s{S_WAVE}, 1
    v_add_u32 v6, s46, v5
    v_and_b32 v7, 31, v1
    v_xor_b32 v6, v6, v7
    v_lshlrev_b32 v6, 4, v6
    v_lshl_add_u32 v6, v5, 9, v6
    s_lshl_b32 s46, s{S_WAVE}, 10
    s_add_u32 s47, s50, s46
    s_add_u32 s46, s46, 65536
    """)
    for u in range(7):
        a(f"s_add_u32 m0, s46, {u*8192}")
        if u:
            a(f"s_add_u32 s47, s47, 8192")
        else:
            a("s_nop 0")
        a.vm(f"buffer_load_dwordx4 v6, s[{SRD_B}:{SRD_B+3}], s47 offen lds")
    a(f"""
    s_and_b32 s52, s{S_WAVE}, 3
    s_lshr_b32 s53, s{S_WAVE}, 2
    s_lshl_b32 s54, s52, 1
    """)
    VA0, VA1, VB = 14, 15, 16
    tr_addr_16(a, VA0, 54, 0)
    tr_addr_16(a, VA1, 54, 1)
    a(f"""
    v_and_b32 v10, 15, v1
    v_lshrrev_b32 v11, 4, v1
    v_xor_b32 v11, v11, v10
    s_lshl_b32 s46, s53, 15
    s_add_u32 s46, s46, 65536
    v_lshl_add_u32 v12, v10, 9, s46
    """)
    for k in range(4):
        a(f"v_xor_b32 v13, {4*k}, v11\nv_lshl_add_u32 v{VB+k}, v13, 4, v12")
    VO = 20
    a(f"""
    v_lshrrev_b32 v11, 4, v1
    v_and_b32 v13, 1, v11
    v_lshlrev_b32 v13, 5, v13
    v_lshrrev_b32 v11, 1, v11
    v_lshl_add_u32 v13, v11, 4, v13
    v_lshl_add_u32 v13, v10, 9, v13
    s_lshl_b32 s46, s49, 8
    s_lshl_b32 s47, s52, 6
    s_add_u32 s46, s46, s47
    v_add_u32 v{VO}, s46, v13
    s_lshl_b32 s55, s53, 15
    """)
    a.wait_all(lgkm=False)
    a("s_barrier")
    a.stamp(1)
    ACC = 24
    BUF = [56, 80]
    def issue(s):
        b = BUF[s & 1]
        for mi, va in enumerate((VA0, VA1)):
            for t in range(2):
                a.ds(f"ds_read_b64_tr_b16 v[{b+4*mi+2*t}:{b+4*mi+2*t+1}], v{va} offset:{s*8192+t*1024}")
        tok = None
        for nbi in range(4):
            tok = a.ds(f"ds_read_b128 v[{b+8+4*nbi}:{b+8+4*nbi+3}], v{VB+(s&3)} offset:{nbi*8192+(s>>2)*256}")
        return tok
    tok = issue(0)
    for s in range(8):
        a.wait(tok)
        if s < 7:
            tok = issue(s + 1)
        b = BUF[s & 1]
        for nbi in range(4):
            for mi in range(2):
                d = ACC + (mi*4 + nbi)*4
                c = "0" if s == 0 else f"v[{d}:{d+3}]"
                a(f"v_mfma_f32_16x16x32_bf16 v[{d}:{d+3}], v[{b+4*mi}:{b+4*mi+3}], v[{b+8+4*nbi}:{b+8+4*nbi+3}], {c}")
    a(f"s_mov_b32 s46, {hex(NEG_LOG2E)}\ns_mov_b32 s47, s46\ns_nop 7")
    for nbi in range(4):
        for mi in range(2):
            d = ACC + (mi*4 + nbi)*4
            for p in range(2):
                a(f"v_pk_mul_f32 v[{d+2*p}:{d+2*p+1}], v[{d+2*p}:{d+2*p+1}], s[46:47]")
        T = 56 + 4*nbi
        d0, d1 = ACC + nbi*4, ACC + (4 + nbi)*4
        a(f"""
        v_cvt_pk_bf16_f32 v{T}, v{d0}, v{d0+1}
        v_cvt_pk_bf16_f32 v{T+1}, v{d0+2}, v{d0+3}
        v_cvt_pk_bf16_f32 v{T+2}, v{d1}, v{d1+1}
        v_cvt_pk_bf16_f32 v{T+3}, v{d1+2}, v{d1+3}
        s_nop 1
        v_permlane16_swap_b32 v{T}, v{T+2}
        v_permlane16_swap_b32 v{T+1}, v{T+3}
        """)
        a.vm(f"buffer_store_dwordx4 v[{T}:{T+3}], v{VO}, s[{SRD_C}:{SRD_C+3}], s55 offen")
        if nbi < 3:
            a("s_add_u32 s55, s55, 8192")
    if STAMP[0]:
        a("s_waitcnt vmcnt(0)")
    a.stamp(2)
    a.stamp_flush(S_WS, 0x800000, 3, S_WAVE, 120)
    a("s_endpgm")

def sort_role(a):
    a.comment("---- counting sort of one 3200-edge chunk by destination bucket")
    CNT, START, R4, R8 = 0, 1024, 2048, 16384
    NR = 7
    a(f"""
    s_mul_i32 s48, s2, {CH*4}
    s_mul_i32 s49, s2, {CH*8}
    """)
    a.srd(SRD_A, S_DST, "s48", CH*4)
    a.srd(SRD_B, S_SRC, "s48", CH*4)
    a.srd(SRD_C, S_EA, "s49", CH*8)
    a("v_lshlrev_b32 v2, 2, v0\nv_lshlrev_b32 v3, 3, v0")
    VD, VS, VE = 8, 16, 24
    tk = []
    for r in range(NR):
        a(f"s_movk_i32 s46, {r*2048}\ns_movk_i32 s47, {r*4096}")
        a.vm(f"buffer_load_dword v{VD+r}, v2, s[{SRD_A}:{SRD_A+3}], s46 offen")
        a.vm(f"buffer_load_dword v{VS+r}, v2, s[{SRD_B}:{SRD_B+3}], s46 offen")
        tk.append(a.vm(f"buffer_load_dwordx2 v[{VE+2*r}:{VE+2*r+1}], v3, s[{SRD_C}:{SRD_C+3}], s47 offen"))
    a(f"s_mul_i32 s50, s2, {200*6}\ns_mul_i32 s51, s2, {200*8}\ns_add_u32 s51, s51, {WS_POSP}")
    a.srd(SRD_D, S_POS, "s50", 200*6)
    a.srd(SRD_E, S_WS, "s51", 200*8)
    a("v_mul_u32_u24 v4, 6, v0")
    for c in range(3):
        tp = a.vm(f"buffer_load_ushort v{40+c}, v4, s[{SRD_D}:{SRD_D+3}], 0 offen offset:{2*c}")
    a(f"""
    v_mov_b32 v5, 0
    v_cmp_gt_u32 vcc, 256, v0
    s_and_saveexec_b64 s[52:53], vcc
    s_cbranch_execz L_sort_zero_done
    """)
    a.ds(f"ds_write_b32 v2, v5 offset:{CNT}")
    a.label("L_sort_zero_done")
    a("s_mov_b64 exec, s[52:53]")
    a.wait_all(vm=False)
    a("s_barrier")
    a.wait(tk[0])
    a.stamp(1)
    VB, VK = 44, 52
    a("s_mov_b32 s46, 52429\nv_mov_b32 v6, 1")
    for r in range(NR):
        if r == NR - 1:
            a(f"s_cmp_ge_u32 s{S_WAVE}, 2\ns_cbranch_scc1 L_sort_r6a")
        a.wait(tk[r])
        a(f"""
        v_mul_u32_u24 v5, s46, v{VD+r}
        v_lshrrev_b32 v5, 21, v5
        v_mul_u32_u24 v7, 40, v5
        v_sub_u32 v7, v{VD+r}, v7
        v_lshl_add_u32 v{VS+r}, v{VS+r}, 9, v7
        v_lshlrev_b32 v{VB+r}, 2, v5
        """)
        a.ds(f"ds_add_rtn_u32 v{VK+r}, v{VB+r}, v6 offset:{CNT}")
    a.label("L_sort_r6a")
    a.wait(tp)
    a(f"""
    v_lshl_or_b32 v40, v41, 16, v40
    v_mov_b32 v41, v42
    """)
    a.vm(f"buffer_store_dwordx2 v[40:41], v3, s[{SRD_E}:{SRD_E+3}], 0 offen")
    a.wait_all(vm=False)
    a("s_barrier")
    a(f"s_cmp_lg_u32 s{S_WAVE}, 0\ns_cbranch_scc1 L_sort_scan_done")
    a("v_lshlrev_b32 v4, 4, v1")
    a.ds(f"ds_read_b128 v[60:63], v4 offset:{CNT}")
    a.wait_all(vm=False)
    a("""
    v_add_u32 v65, v60, v61
    v_add_u32 v66, v65, v62
    v_add_u32 v67, v66, v63
    v_mov_b32 v68, v67
    s_nop 1
    v_add_u32_dpp v68, v68, v68 row_shr:1 row_mask:0xf bank_mask:0xf bound_ctrl:0
    s_nop 1
    v_add_u32_dpp v68, v68, v68 row_shr:2 row_mask:0xf bank_mask:0xf bound_ctrl:0
    s_nop 1
    v_add_u32_dpp v68, v68, v68 row_shr:4 row_mask:0xf bank_mask:0xf bound_ctrl:0
    s_nop 1
    v_add_u32_dpp v68, v68, v68 row_shr:8 row_mask:0xf bank_mask:0xf bound_ctrl:0
    s_nop 1
    v_add_u32_dpp v68, v68, v68 row_bcast:15 row_mask:0xa bank_mask:0xf
    s_nop 1
    v_add_u32_dpp v68, v68, v68 row_bcast:31 row_mask:0xc bank_mask:0xf
    v_sub_u32 v72, v68, v67
    v_add_u32 v73, v72, v60
    v_add_u32 v74, v72, v65
    v_add_u32 v75, v72, v66
    """)
    a.ds(f"ds_write_b128 v4, v[72:75] offset:{START}")
    a(f"s_lshl_b32 s50, s2, 2\ns_add_u32 s50, s50, {WS_OFFS}")
    a.srd(SRD_D, S_WS, "s50", NB*256 - 200)
    a("v_lshlrev_b32 v5, 10, v1")
    for i in range(4):
        a(f"v_lshl_or_b32 v{76+i}, v{60+i}, 16, v{72+i}")
        a.vm(f"buffer_store_dword v{76+i}, v5, s[{SRD_D}:{SRD_D+3}], 0 offen offset:{i*256}")
    a.wait_all(vm=False)
    a.label("L_sort_scan_done")
    a("s_barrier")
    VP = 60
    toks = []
    for r in range(NR):
        if r == NR - 1:
            a(f"s_cmp_ge_u32 s{S_WAVE}, 2\ns_cbranch_scc1 L_sort_r6b")
        toks.append(a.ds(f"ds_read_b32 v{VP+r}, v{VB+r} offset:{START}"))
    a.label("L_sort_r6b")
    a.wait_all(vm=False)
    for r in range(NR):
        if r == NR - 1:
            a(f"s_cmp_ge_u32 s{S_WAVE}, 2\ns_cbranch_scc1 L_sort_r6c")
        a(f"""
        v_add_u32 v5, v{VP+r}, v{VK+r}
        v_lshlrev_b32 v7, 3, v5
        v_lshlrev_b32 v5, 2, v5
        """)
        a.ds(f"ds_write_b32 v5, v{VS+r} offset:{R4}")
        a.ds(f"ds_write_b64 v7, v[{VE+2*r}:{VE+2*r+1}] offset:{R8}")
    a.label("L_sort_r6c")
    a.wait_all(vm=False)
    a("s_barrier")
    a(f"s_add_u32 s50, s48, {WS_REC4}\ns_add_u32 s51, s49, {WS_REC8}")
    a.srd(SRD_A, S_WS, "s50", CH*4)
    a.srd(SRD_B, S_WS, "s51", CH*8)
    a("v_lshlrev_b32 v4, 4, v0")
    outs = [(R4, SRD_A, 0), (R4, SRD_A, 8192), (R8, SRD_B, 0), (R8, SRD_B, 8192), (R8, SRD_B, 16384), (R8, SRD_B, 24576)]
    toks = [a.ds(f"ds_read_b128 v[{80+4*i}:{83+4*i}], v4 offset:{base+off}") for i, (base, srd, off) in enumerate(outs)]
    for i, (base, srd, off) in enumerate(outs):
        a(f"s_movk_i32 s46, {off}")
        a.wait(toks[i])
        a.vm(f"buffer_store_dwordx4 v[{80+4*i}:{83+4*i}], v4, s[{srd}:{srd+3}], s46 offen")
    if STAMP[0]:
        a("s_waitcnt vmcnt(0)")
    a.stamp(2)
    a.stamp_flush(S_WS, 0x800000, 3, S_WAVE, 120)
    a("s_endpgm")

def ref_role(a):
    a.comment("---- weight re-layout into MFMA fragment order, extras-weight split")
    a(f"""
    s_sub_u32 s3, s2, {N_SORT}
    s_lshr_b32 s48, s3, 1
    s_and_b32 s49, s3, 1
    s_cmp_eq_u32 s48, 0
    s_cselect_b32 s50, s{S_WE}, s{S_WH}
    s_cselect_b32 s51, s{S_WE+1}, s{S_WH+1}
    s_cmp_eq_u32 s48, 2
    s_cselect_b32 s52, {256*512}, 0
    """)
    a.srd(SRD_A, 50, "s52", 256*512)
    w_slice_dma(a, SRD_A, 49)
    a(f"""
    s_lshl_b32 s52, s48, 17
    s_add_u32 s52, s52, {WS_W1F}
    """)
    a.srd(SRD_B, S_WS, "s52", 131072)
    a(f"""
    s_cmp_lg_u32 s48, 0
    s_cbranch_scc1 L_ref_nowx
    s_cmp_ge_u32 s{S_WAVE}, 4
    s_cbranch_scc1 L_ref_nowx
    """)
    a.srd(SRD_C, S_WE, 512*512, 5*512)
    a.srd(SRD_D, S_WS, WS_WXF, 4096)
    a(f"""
    s_lshl_b32 s46, s49, 2
    s_add_u32 s46, s46, s{S_WAVE}
    v_and_b32 v20, 31, v1
    s_lshl_b32 s47, s46, 6
    v_lshl_add_u32 v20, v20, 1, s47
    """)
    for k in range(5):
        t = a.vm(f"buffer_load_ushort v{22+k}, v20, s[{SRD_C}:{SRD_C+3}], 0 offen offset:{k*512}")
    a.wait(t)
    a(f"s_mov_b32 s47, {hex(NEG_LOG2E)}")
    for k in range(5):
        a(f"""
        v_lshlrev_b32 v{22+k}, 16, v{22+k}
        v_mul_f32 v{22+k}, s47, v{22+k}
        v_cvt_pk_bf16_f32 v{28+k}, v{22+k}, v{22+k}
        v_and_b32 v27, 0xffff0000, v{28+k}
        v_sub_f32 v27, v{22+k}, v27
        v_cvt_pk_bf16_f32 v{34+k}, v27, v27
        """)
    a("""
    s_mov_b32 s47, 0xffff
    v_and_b32 v40, s47, v29
    v_lshl_or_b32 v40, v30, 16, v40
    v_and_b32 v41, s47, v31
    v_lshl_or_b32 v41, v32, 16, v41
    v_and_b32 v42, s47, v28
    v_lshl_or_b32 v42, v34, 16, v42
    v_and_b32 v43, s47, v35
    v_lshl_or_b32 v43, v36, 16, v43
    v_cmp_gt_u32 vcc, 32, v1
    s_nop 1
    v_cndmask_b32 v44, v42, v40, vcc
    v_cndmask_b32 v45, v43, v41, vcc
    v_lshlrev_b32 v20, 3, v1
    s_lshl_b32 s46, s46, 9
    """)
    a.vm(f"buffer_store_dwordx2 v[44:45], v20, s[{SRD_D}:{SRD_D+3}], s46 offen")
    a.label("L_ref_nowx")
    a.wait_all(lgkm=False)
    a("s_barrier")
    a("v_lshlrev_b32 v21, 4, v1")
    a("s_cmp_lg_u32 s48, 0\ns_cbranch_scc1 L_ref_k16")
    a(f"""
    s_lshr_b32 s52, s{S_WAVE}, 2
    s_bfe_u32 s53, s{S_WAVE}, 0x10001
    s_and_b32 s54, s{S_WAVE}, 1
    s_lshl_b32 s55, s52, 2
    s_lshl_b32 s56, s53, 1
    s_add_u32 s55, s55, s56
    v_lshrrev_b32 v10, 5, v1
    v_bfe_u32 v11, v1, 4, 1
    v_bfe_u32 v12, v1, 2, 2
    v_lshl_or_b32 v13, v10, 2, v12
    v_add_u32 v11, s55, v11
    v_xor_b32 v11, v11, v13
    v_lshlrev_b32 v11, 5, v11
    v_lshl_add_u32 v13, v10, 3, v12
    v_lshl_add_u32 v11, v13, 8, v11
    v_and_b32 v13, 3, v1
    v_lshl_add_u32 v11, v13, 3, v11
    s_lshl_b32 s56, s54, 15
    v_add_u32 v11, s56, v11
    s_lshl_b32 s56, s49, 1
    s_add_u32 s56, s56, s52
    s_lshl_b32 s56, s56, 1
    s_add_u32 s56, s56, s53
    s_lshl_b32 s56, s56, 4
    s_lshl_b32 s57, s54, 3
    s_add_u32 s56, s56, s57
    s_lshl_b32 s56, s56, 10
    """)
    toks = []
    for s in range(8):
        a.ds(f"ds_read_b64_tr_b16 v[{24+4*s}:{25+4*s}], v11 offset:{s*4096}")
        toks.append(a.ds(f"ds_read_b64_tr_b16 v[{26+4*s}:{27+4*s}], v11 offset:{s*4096+1024}"))
        if s == 6:
            a.wait(toks[0])
    for s in range(8):
        a.wait(toks[s])
        a.vm(f"buffer_store_dwordx4 v[{24+4*s}:{27+4*s}], v21, s[{SRD_B}:{SRD_B+3}], s56 offen")
        if s < 7:
            a("s_add_u32 s56, s56, 1024")
    a("s_endpgm")
    a.label("L_ref_k16")
    a.n["lgkm"] = a.done["lgkm"] = 0
    a(f"""
    s_lshr_b32 s52, s{S_WAVE}, 2
    s_and_b32 s53, s{S_WAVE}, 3
    s_lshl_b32 s55, s52, 2
    s_add_u32 s55, s55, s53
    """)
    tr_addr_16(a, 11, 55, 0)
    a(f"""
    s_lshl_b32 s56, s49, 1
    s_add_u32 s56, s56, s52
    s_lshl_b32 s56, s56, 2
    s_add_u32 s56, s56, s53
    s_lshl_b32 s56, s56, 13
    """)
    toks = []
    for s in range(8):
        a.ds(f"ds_read_b64_tr_b16 v[{24+4*s}:{25+4*s}], v11 offset:{s*8192}")
        toks.append(a.ds(f"ds_read_b64_tr_b16 v[{26+4*s}:{27+4*s}], v11 offset:{s*8192+1024}"))
        if s == 6:
            a.wait(toks[0])
    for s in range(8):
        a.wait(toks[s])
        a.vm(f"buffer_store_dwordx4 v[{24+4*s}:{27+4*s}], v21, s[{SRD_B}:{SRD_B+3}], s56 offen")
        if s < 7:
            a("s_add_u32 s56, s56, 1024")
    a("s_endpgm")

def prep_kernel(name):
    a = Asm()
    a.raw(f".globl {name}\n.p2align 8\n.type {name},@function\n{name}:")
    a(f"""
    s_cmp_ge_u32 s2, {PREP_GRID}
    s_cbranch_scc1 L_prep_exit
    s_load_dwordx16 s[4:19], s[0:1], 0
    s_load_dwordx2 s[20:21], s[0:1], 80
    v_and_b32 v1, 63, v0
    v_lshrrev_b32 v2, 6, v0
    s_nop 0
    v_readfirstlane_b32 s{S_WAVE}, v2
    s_waitcnt lgkmcnt(0)
    """)
    a.stamp(0)
    a(f"""
    s_cmp_lt_u32 s2, {N_SORT}
    s_cbranch_scc1 L_prep_sort
    s_cmp_lt_u32 s2, {N_SORT + N_REF}
    s_cbranch_scc1 L_prep_ref
    """)
    gemm_role(a)
    a.label("L_prep_sort")
    a.n = {"vm": 0, "lgkm": 0}; a.done = {"vm": 0, "lgkm": 0}
    sort_role(a)
    a.label("L_prep_ref")
    a.n = {"vm": 0, "lgkm": 0}; a.done = {"vm": 0, "lgkm": 0}
    ref_role(a)
    a.label("L_prep_exit")
    a("s_endpgm")
    return a.text()
```

```python
import sys
sys.path.insert(0, "gen")
import importlib
import k_prep, asmlib, os
import importlib
k_main = importlib.import_module(os.environ.get('KM', 'k_main7'))
if os.environ.get('STAMP'): asmlib.STAMP[0] = os.environ['STAMP']
from layout import *

HEADER = """; Kernarg layout for this problem (88 bytes, ptrs only, base s[0:1]):
"""

def kd(name, vgpr, accum, sgpr=102):
    return f""".section .rodata,"a"
.p2align 6
.amdhsa_kernel {name}
  .amdhsa_next_free_vgpr {vgpr}
  .amdhsa_next_free_sgpr {sgpr}
  .amdhsa_accum_offset {accum}
  .amdhsa_group_segment_fixed_size 0
  .amdhsa_kernarg_size 88
  .amdhsa_user_sgpr_count 2
  .amdhsa_user_sgpr_kernarg_segment_ptr 1
  .amdhsa_system_sgpr_workgroup_id_x 1
  .amdhsa_float_denorm_mode_32 3
.end_amdhsa_kernel
.text
"""

def generate():
    p = "egnn_prep_kernel"; m = "egnn_main_kernel"
    s = HEADER
    s += f"; @launch kernel={p} grid=({k_prep.PREP_GRID},1,1) block=(512,1,1) lds={k_prep.PREP_LDS}\n"
    s += f"; @launch kernel={m} grid=({NB},1,1) block=(256,1,1) lds={k_main.MAIN_LDS}\n"
    s += '.amdgcn_target "amdgcn-amd-amdhsa--gfx950"\n.text\n'
    s += k_prep.prep_kernel(p) + kd(p, 128, 128)
    s += k_main.main_kernel(m) + kd(m, 512, 256)
    return s

if __name__ == "__main__":
    out = sys.argv[1] if len(sys.argv) > 1 else "standalone__cheap_equivariant_egnn__graph.s"
    open(out, "w").write(generate())
    print("wrote", out)
```

```python
STAMP = [False]

class Tok:
    __slots__ = ("cls", "idx")
    def __init__(self, cls, idx):
        self.cls, self.idx = cls, idx

class Asm:
    def __init__(self):
        self.lines = []
        self.n = {"vm": 0, "lgkm": 0}
        self.done = {"vm": 0, "lgkm": 0}
        self.uid = 0

    def __call__(self, s):
        for ln in s.strip("\n").split("\n"):
            ln = ln.strip()
            if ln:
                self.lines.append("  " + ln)

    def label(self, name):
        self.lines.append(name + ":")

    def comment(self, s):
        self.lines.append("  ; " + s)

    def raw(self, s):
        self.lines.append(s)

    def fresh(self, base):
        self.uid += 1
        return f"{base}_{self.uid}"

    def vm(self, s):
        self(s)
        self.n["vm"] += 1
        return Tok("vm", self.n["vm"])

    def ds(self, s):
        self(s)
        self.n["lgkm"] += 1
        return Tok("lgkm", self.n["lgkm"])

    def wait(self, *toks):
        need = {}
        for t in toks:
            if t is None:
                continue
            if t.idx > self.done[t.cls]:
                need[t.cls] = max(need.get(t.cls, 0), t.idx)
        parts = []
        for cls, name, mx in (("vm", "vmcnt", 63), ("lgkm", "lgkmcnt", 15)):
            if cls in need:
                cnt = min(self.n[cls] - need[cls], mx)
                parts.append(f"{name}({cnt})")
                self.done[cls] = self.n[cls] - cnt
        if parts:
            self("s_waitcnt " + " ".join(parts))

    def wait_all(self, vm=True, lgkm=True):
        parts = []
        if vm:
            parts.append("vmcnt(0)"); self.done["vm"] = self.n["vm"]
        if lgkm:
            parts.append("lgkmcnt(0)"); self.done["lgkm"] = self.n["lgkm"]
        self("s_waitcnt " + " ".join(parts))

    def srd(self, d, lo, off, size):
        if off == 0:
            self(f"s_mov_b32 s{d}, s{lo}\ns_mov_b32 s{d+1}, s{lo+1}")
        else:
            o = off if isinstance(off, str) else hex(off)
            self(f"s_add_u32 s{d}, s{lo}, {o}\ns_addc_u32 s{d+1}, s{lo+1}, 0")
        self(f"s_mov_b32 s{d+2}, {size}\ns_mov_b32 s{d+3}, 0x20000")

    def stamp(self, i):
        if not STAMP[0]:
            return
        self("s_memrealtime s[84:85]\ns_waitcnt lgkmcnt(0)\ns_mov_b32 s%d, s84" % (86 + i))
        self.done["lgkm"] = self.n["lgkm"]

    def cstamp(self, i):
        if not STAMP[0]:
            return
        self("s_memtime s[84:85]\ns_waitcnt lgkmcnt(0)\ns_mov_b32 s%d, s84" % (86 + i))
        self.done["lgkm"] = self.n["lgkm"]

    def stamp_flush(self, ws, base, n, wave_sgpr, vtmp):
        if not STAMP[0]:
            return
        if STAMP[0] == "dbg":
            if base != 0x800000:
                lab = self.fresh("L_stamp")
                self(f"s_cmp_lg_u32 s{wave_sgpr}, 0\ns_cbranch_scc1 {lab}\ns_cmp_lg_u32 s2, 100\ns_cbranch_scc1 {lab}")
                self("s_load_dwordx2 s[80:81], s[0:1], 72\ns_waitcnt lgkmcnt(0)\ns_mov_b32 s82, 64\ns_mov_b32 s83, 0x20000")
                self(f"v_mov_b32 v{vtmp+1}, 0")
                for i in range(n):
                    self(f"v_mov_b32 v{vtmp}, s{86+i}\nbuffer_store_dword v{vtmp}, v{vtmp+1}, s[80:83], 0 offen offset:{4*i}\ns_nop 1")
                self.label(lab)
                return
            lab = self.fresh("L_stamp")
            self(f"s_cmp_lg_u32 s{wave_sgpr}, 0\ns_cbranch_scc1 {lab}")
            self("s_mov_b32 s82, -1\ns_cmp_eq_u32 s2, 0\ns_cselect_b32 s82, 0, s82\ns_cmp_eq_u32 s2, 56\ns_cselect_b32 s82, 16, s82\ns_cmp_eq_u32 s2, 255\ns_cselect_b32 s82, 32, s82\ns_cmp_eq_u32 s2, 49\ns_cselect_b32 s82, 48, s82")
            self(f"s_cmp_eq_u32 s82, -1\ns_cbranch_scc1 {lab}")
            self("s_load_dwordx2 s[80:81], s[0:1], 72\ns_waitcnt lgkmcnt(0)\ns_add_u32 s80, s80, s82\ns_addc_u32 s81, s81, 0\ns_mov_b32 s82, 16\ns_mov_b32 s83, 0x20000")
            self(f"v_mov_b32 v{vtmp+1}, 0")
            for i in range(3):
                self(f"v_mov_b32 v{vtmp}, s{86+i}\nbuffer_store_dword v{vtmp}, v{vtmp+1}, s[80:83], 0 offen offset:{4*i}\ns_nop 1")
            self.label(lab)
            return
        lab = self.fresh("L_stamp")
        self(f"s_cmp_lg_u32 s{wave_sgpr}, 0\ns_cbranch_scc1 {lab}")
        self(f"s_lshl_b32 s82, s2, 6\ns_add_u32 s82, s82, {base}")
        self(f"s_add_u32 s80, s{ws}, s82\ns_addc_u32 s81, s{ws+1}, 0\ns_mov_b32 s82, 64\ns_mov_b32 s83, 0x20000")
        self(f"v_mov_b32 v{vtmp+1}, 0")
        for i in range(n):
            self(f"v_mov_b32 v{vtmp}, s{86+i}\nbuffer_store_dword v{vtmp}, v{vtmp+1}, s[80:83], 0 offen offset:{4*i}\ns_nop 1")
        self.label(lab)

    def text(self):
        return "\n".join(self.lines) + "\n"

def vr(b, n=1):
    return f"v{b}" if n == 1 else f"v[{b}:{b+n-1}]"
def ar(b, n=1):
    return f"a{b}" if n == 1 else f"a[{b}:{b+n-1}]"
def sr(b, n=1):
    return f"s{b}" if n == 1 else f"s[{b}:{b+n-1}]"


class Rec:
    def __init__(self):
        self.ops = []
    def __call__(self, s):
        for ln in s.strip("\n").split("\n"):
            ln = ln.strip()
            if ln:
                self.ops.append(("i", ln))
    def atomic(self, s):
        self.ops.append(("i", "\n".join(l.strip() for l in s.strip("\n").split("\n") if l.strip())))
    def vm(self, s):
        t = Tok("vm", None); self.ops.append(("vm", s, t)); return t
    def ds(self, s):
        t = Tok("lgkm", None); self.ops.append(("ds", s, t)); return t
    def masked_ds(self, mask, lines):
        toks = [Tok("lgkm", None) for _ in lines]
        self.ops.append(("mds", mask, lines, toks)); return toks
    def wait(self, *toks):
        self.ops.append(("wait", toks))
    def wait_all(self, vm=True, lgkm=True):
        self.ops.append(("waitall", vm, lgkm))
    def at(self, k):
        self.ops.append(("at", k))
    def srd(self, d, lo, off, size):
        tmp = Asm(); tmp.srd(d, lo, off, size)
        self.ops.append(("i", "\n".join(ln.strip() for ln in tmp.lines)))
    def stamp(self, i):
        self.ops.append(("stamp", i))
    def comment(self, s):
        pass

def play(a, op):
    k = op[0]
    if k == "i": a(op[1])
    elif k == "vm":
        t = a.vm(op[1]); op[2].idx = t.idx
    elif k == "ds":
        t = a.ds(op[1]); op[2].idx = t.idx
    elif k == "mds":
        a(f"s_mov_b64 exec, {op[1]}")
        for ln, tok in zip(op[2], op[3]):
            t = a.ds(ln); tok.idx = t.idx
        a("s_mov_b64 exec, -1")
    elif k == "wait": a.wait(*op[1])
    elif k == "waitall": a.wait_all(op[1], op[2])
    elif k == "stamp": a.stamp(op[1])

class Merger:
    def __init__(self, a, rec):
        self.a, self.ops, self.pos, self.tick = a, rec.ops, 0, 0
    def step(self, budget):
        self.tick += 1
        n = 0
        while self.pos < len(self.ops) and n < budget:
            op = self.ops[self.pos]
            if op[0] == "at":
                if op[1] > self.tick:
                    return
                self.pos += 1
                continue
            play(self.a, op)
            self.pos += 1
            n += 1
    def drain(self):
        while self.pos < len(self.ops):
            op = self.ops[self.pos]
            if op[0] != "at":
                play(self.a, op)
            self.pos += 1

def masked_ds(a, mask, lines):
    if isinstance(a, Rec):
        return a.masked_ds(mask, lines)
    a(f"s_mov_b64 exec, {mask}")
    toks = [a.ds(ln) for ln in lines]
    a("s_mov_b64 exec, -1")
    return toks
```

```python
STAMP = [False]

class Tok:
    __slots__ = ("cls", "idx")
    def __init__(self, cls, idx):
        self.cls, self.idx = cls, idx

class Asm:
    def __init__(self):
        self.lines = []
        self.n = {"vm": 0, "lgkm": 0}
        self.done = {"vm": 0, "lgkm": 0}
        self.uid = 0

    def __call__(self, s):
        for ln in s.strip("\n").split("\n"):
            ln = ln.strip()
            if ln:
                self.lines.append("  " + ln)

    def label(self, name):
        self.lines.append(name + ":")

    def comment(self, s):
        self.lines.append("  ; " + s)

    def raw(self, s):
        self.lines.append(s)

    def fresh(self, base):
        self.uid += 1
        return f"{base}_{self.uid}"

    def vm(self, s):
        self(s)
        self.n["vm"] += 1
        return Tok("vm", self.n["vm"])

    def ds(self, s):
        self(s)
        self.n["lgkm"] += 1
        return Tok("lgkm", self.n["lgkm"])

    def wait(self, *toks):
        need = {}
        for t in toks:
            if t is None:
                continue
            if t.idx > self.done[t.cls]:
                need[t.cls] = max(need.get(t.cls, 0), t.idx)
        parts = []
        for cls, name, mx in (("vm", "vmcnt", 63), ("lgkm", "lgkmcnt", 15)):
            if cls in need:
                cnt = min(self.n[cls] - need[cls], mx)
                parts.append(f"{name}({cnt})")
                self.done[cls] = self.n[cls] - cnt
        if parts:
            self("s_waitcnt " + " ".join(parts))

    def wait_all(self, vm=True, lgkm=True):
        parts = []
        if vm:
            parts.append("vmcnt(0)"); self.done["vm"] = self.n["vm"]
        if lgkm:
            parts.append("lgkmcnt(0)"); self.done["lgkm"] = self.n["lgkm"]
        self("s_waitcnt " + " ".join(parts))

    def srd(self, d, lo, off, size):
        if off == 0:
            self(f"s_mov_b32 s{d}, s{lo}\ns_mov_b32 s{d+1}, s{lo+1}")
        else:
            o = off if isinstance(off, str) else hex(off)
            self(f"s_add_u32 s{d}, s{lo}, {o}\ns_addc_u32 s{d+1}, s{lo+1}, 0")
        self(f"s_mov_b32 s{d+2}, {size}\ns_mov_b32 s{d+3}, 0x20000")

    def stamp(self, i):
        if not STAMP[0]:
            return
        self("s_memrealtime s[84:85]\ns_waitcnt lgkmcnt(0)\ns_mov_b32 s%d, s84" % (86 + i))
        self.done["lgkm"] = self.n["lgkm"]

    def cstamp(self, i):
        if not STAMP[0]:
            return
        self("s_memtime s[84:85]\ns_waitcnt lgkmcnt(0)\ns_mov_b32 s%d, s84" % (86 + i))
        self.done["lgkm"] = self.n["lgkm"]

    def stamp_flush(self, ws, base, n, wave_sgpr, vtmp):
        if not STAMP[0]:
            return
        if STAMP[0] == "dbg" and base != 0x800000:
            lab = self.fresh("L_stamp")
            self(f"s_cmp_lg_u32 s{wave_sgpr}, 0\ns_cbranch_scc1 {lab}\ns_cmp_lg_u32 s2, 100\ns_cbranch_scc1 {lab}")
            self(f"s_add_u32 s80, s{ws}, 0x800000\ns_addc_u32 s81, s{ws+1}, 0")
            self("s_load_dwordx4 s[88:91], s[80:81], 0\ns_load_dwordx4 s[92:95], s[80:81], %d\ns_load_dwordx4 s[96:99], s[80:81], %d\ns_waitcnt lgkmcnt(0)" % (56*64, 255*64))
            self("s_load_dwordx2 s[80:81], s[0:1], 72\ns_waitcnt lgkmcnt(0)\ns_mov_b32 s82, 64\ns_mov_b32 s83, 0x20000")
            self(f"v_mov_b32 v{vtmp+1}, 0")
            for i in range(14):
                self(f"v_mov_b32 v{vtmp}, s{86+i}\nbuffer_store_dword v{vtmp}, v{vtmp+1}, s[80:83], 0 offen offset:{4*i}\ns_nop 1")
            self.label(lab)
            return
        lab = self.fresh("L_stamp")
        self(f"s_cmp_lg_u32 s{wave_sgpr}, 0\ns_cbranch_scc1 {lab}")
        self(f"s_lshl_b32 s82, s2, 6\ns_add_u32 s82, s82, {base}")
        self(f"s_add_u32 s80, s{ws}, s82\ns_addc_u32 s81, s{ws+1}, 0\ns_mov_b32 s82, 64\ns_mov_b32 s83, 0x20000")
        self(f"v_mov_b32 v{vtmp+1}, 0")
        for i in range(n):
            self(f"v_mov_b32 v{vtmp}, s{86+i}\nbuffer_store_dword v{vtmp}, v{vtmp+1}, s[80:83], 0 offen offset:{4*i}\ns_nop 1")
        self.label(lab)

    def text(self):
        return "\n".join(self.lines) + "\n"

def vr(b, n=1):
    return f"v{b}" if n == 1 else f"v[{b}:{b+n-1}]"
def ar(b, n=1):
    return f"a{b}" if n == 1 else f"a[{b}:{b+n-1}]"
def sr(b, n=1):
    return f"s{b}" if n == 1 else f"s[{b}:{b+n-1}]"


class Rec:
    def __init__(self):
        self.ops = []
    def __call__(self, s):
        for ln in s.strip("\n").split("\n"):
            ln = ln.strip()
            if ln:
                self.ops.append(("i", ln))
    def atomic(self, s):
        self.ops.append(("i", "\n".join(l.strip() for l in s.strip("\n").split("\n") if l.strip())))
    def vm(self, s):
        t = Tok("vm", None); self.ops.append(("vm", s, t)); return t
    def ds(self, s):
        t = Tok("lgkm", None); self.ops.append(("ds", s, t)); return t
    def masked_ds(self, mask, lines):
        toks = [Tok("lgkm", None) for _ in lines]
        self.ops.append(("mds", mask, lines, toks)); return toks
    def wait(self, *toks):
        self.ops.append(("wait", toks))
    def wait_all(self, vm=True, lgkm=True):
        self.ops.append(("waitall", vm, lgkm))
    def at(self, k):
        self.ops.append(("at", k))
    def srd(self, d, lo, off, size):
        tmp = Asm(); tmp.srd(d, lo, off, size)
        self.ops.append(("i", "\n".join(ln.strip() for ln in tmp.lines)))
    def stamp(self, i):
        self.ops.append(("stamp", i))
    def comment(self, s):
        pass

def play(a, op):
    k = op[0]
    if k == "i": a(op[1])
    elif k == "vm":
        t = a.vm(op[1]); op[2].idx = t.idx
    elif k == "ds":
        t = a.ds(op[1]); op[2].idx = t.idx
    elif k == "mds":
        a(f"s_mov_b64 exec, {op[1]}")
        for ln, tok in zip(op[2], op[3]):
            t = a.ds(ln); tok.idx = t.idx
        a("s_mov_b64 exec, -1")
    elif k == "wait": a.wait(*op[1])
    elif k == "waitall": a.wait_all(op[1], op[2])
    elif k == "stamp": a.stamp(op[1])

class Merger:
    def __init__(self, a, rec):
        self.a, self.ops, self.pos, self.tick = a, rec.ops, 0, 0
    def step(self, budget):
        self.tick += 1
        n = 0
        while self.pos < len(self.ops) and n < budget:
            op = self.ops[self.pos]
            if op[0] == "at":
                if op[1] > self.tick:
                    return
                self.pos += 1
                continue
            play(self.a, op)
            self.pos += 1
            n += 1
    def drain(self):
        while self.pos < len(self.ops):
            op = self.ops[self.pos]
            if op[0] != "at":
                play(self.a, op)
            self.pos += 1

def masked_ds(a, mask, lines):
    if isinstance(a, Rec):
        return a.masked_ds(mask, lines)
    a(f"s_mov_b64 exec, {mask}")
    toks = [a.ds(ln) for ln in lines]
    a("s_mov_b64 exec, -1")
    return toks
```

```python
STAMP = [False]

class Tok:
    __slots__ = ("cls", "idx")
    def __init__(self, cls, idx):
        self.cls, self.idx = cls, idx

class Asm:
    def __init__(self):
        self.lines = []
        self.n = {"vm": 0, "lgkm": 0}
        self.done = {"vm": 0, "lgkm": 0}
        self.uid = 0

    def __call__(self, s):
        for ln in s.strip("\n").split("\n"):
            ln = ln.strip()
            if ln:
                self.lines.append("  " + ln)

    def label(self, name):
        self.lines.append(name + ":")

    def comment(self, s):
        self.lines.append("  ; " + s)

    def raw(self, s):
        self.lines.append(s)

    def fresh(self, base):
        self.uid += 1
        return f"{base}_{self.uid}"

    def vm(self, s):
        self(s)
        self.n["vm"] += 1
        return Tok("vm", self.n["vm"])

    def ds(self, s):
        self(s)
        self.n["lgkm"] += 1
        return Tok("lgkm", self.n["lgkm"])

    def wait(self, *toks):
        need = {}
        for t in toks:
            if t is None:
                continue
            if t.idx > self.done[t.cls]:
                need[t.cls] = max(need.get(t.cls, 0), t.idx)
        parts = []
        for cls, name, mx in (("vm", "vmcnt", 63), ("lgkm", "lgkmcnt", 15)):
            if cls in need:
                cnt = min(self.n[cls] - need[cls], mx)
                parts.append(f"{name}({cnt})")
                self.done[cls] = self.n[cls] - cnt
        if parts:
            self("s_waitcnt " + " ".join(parts))

    def wait_all(self, vm=True, lgkm=True):
        parts = []
        if vm:
            parts.append("vmcnt(0)"); self.done["vm"] = self.n["vm"]
        if lgkm:
            parts.append("lgkmcnt(0)"); self.done["lgkm"] = self.n["lgkm"]
        self("s_waitcnt " + " ".join(parts))

    def srd(self, d, lo, off, size):
        if off == 0:
            self(f"s_mov_b32 s{d}, s{lo}\ns_mov_b32 s{d+1}, s{lo+1}")
        else:
            o = off if isinstance(off, str) else hex(off)
            self(f"s_add_u32 s{d}, s{lo}, {o}\ns_addc_u32 s{d+1}, s{lo+1}, 0")
        self(f"s_mov_b32 s{d+2}, {size}\ns_mov_b32 s{d+3}, 0x20000")

    def stamp(self, i):
        if not STAMP[0]:
            return
        self("s_memrealtime s[84:85]\ns_waitcnt lgkmcnt(0)\ns_mov_b32 s%d, s84" % (86 + i))
        self.done["lgkm"] = self.n["lgkm"]

    def cstamp(self, i):
        if not STAMP[0]:
            return
        self("s_memtime s[84:85]\ns_waitcnt lgkmcnt(0)\ns_mov_b32 s%d, s84" % (86 + i))
        self.done["lgkm"] = self.n["lgkm"]

    def stamp_flush(self, ws, base, n, wave_sgpr, vtmp):
        if not STAMP[0]:
            return
        if STAMP[0] == "dbg" and base != 0x800000:
            lab = self.fresh("L_stamp")
            self(f"s_cmp_lg_u32 s{wave_sgpr}, 0\ns_cbranch_scc1 {lab}\ns_cmp_lg_u32 s2, 100\ns_cbranch_scc1 {lab}")
            self(f"s_add_u32 s80, s{ws}, 0x800000\ns_addc_u32 s81, s{ws+1}, 0")
            self("s_load_dwordx4 s[88:91], s[80:81], 0\ns_load_dwordx4 s[92:95], s[80:81], %d\ns_load_dwordx4 s[96:99], s[80:81], %d\ns_waitcnt lgkmcnt(0)" % (56*64, 255*64))
            self("s_load_dwordx2 s[80:81], s[0:1], 72\ns_waitcnt lgkmcnt(0)\ns_mov_b32 s82, 64\ns_mov_b32 s83, 0x20000")
            self(f"v_mov_b32 v{vtmp+1}, 0")
            for i in range(14):
                self(f"v_mov_b32 v{vtmp}, s{86+i}\nbuffer_store_dword v{vtmp}, v{vtmp+1}, s[80:83], 0 offen offset:{4*i}\ns_nop 1")
            self.label(lab)
            return
        lab = self.fresh("L_stamp")
        self(f"s_cmp_lg_u32 s{wave_sgpr}, 0\ns_cbranch_scc1 {lab}")
        self(f"s_lshl_b32 s82, s2, 6\ns_add_u32 s82, s82, {base}")
        self(f"s_add_u32 s80, s{ws}, s82\ns_addc_u32 s81, s{ws+1}, 0\ns_mov_b32 s82, 64\ns_mov_b32 s83, 0x20000")
        self(f"v_mov_b32 v{vtmp+1}, 0")
        for i in range(n):
            self(f"v_mov_b32 v{vtmp}, s{86+i}\nbuffer_store_dword v{vtmp}, v{vtmp+1}, s[80:83], 0 offen offset:{4*i}\ns_nop 1")
        self.label(lab)

    def text(self):
        return "\n".join(self.lines) + "\n"

def vr(b, n=1):
    return f"v{b}" if n == 1 else f"v[{b}:{b+n-1}]"
def ar(b, n=1):
    return f"a{b}" if n == 1 else f"a[{b}:{b+n-1}]"
def sr(b, n=1):
    return f"s{b}" if n == 1 else f"s[{b}:{b+n-1}]"


class Rec:
    def __init__(self):
        self.ops = []
    def __call__(self, s):
        for ln in s.strip("\n").split("\n"):
            ln = ln.strip()
            if ln:
                self.ops.append(("i", ln))
    def atomic(self, s):
        self.ops.append(("i", "\n".join(l.strip() for l in s.strip("\n").split("\n") if l.strip())))
    def vm(self, s):
        t = Tok("vm", None); self.ops.append(("vm", s, t)); return t
    def ds(self, s):
        t = Tok("lgkm", None); self.ops.append(("ds", s, t)); return t
    def masked_ds(self, mask, lines):
        toks = [Tok("lgkm", None) for _ in lines]
        self.ops.append(("mds", mask, lines, toks)); return toks
    def wait(self, *toks):
        self.ops.append(("wait", toks))
    def wait_all(self, vm=True, lgkm=True):
        self.ops.append(("waitall", vm, lgkm))
    def gap(self, k):
        self.ops.append(("gap", k))
    def at(self, k):
        self.ops.append(("at", k))
    def srd(self, d, lo, off, size):
        tmp = Asm(); tmp.srd(d, lo, off, size)
        self.ops.append(("i", "\n".join(ln.strip() for ln in tmp.lines)))
    def stamp(self, i):
        self.ops.append(("stamp", i))
    def comment(self, s):
        pass

def play(a, op):
    k = op[0]
    if k == "i": a(op[1])
    elif k == "vm":
        t = a.vm(op[1]); op[2].idx = t.idx
    elif k == "ds":
        t = a.ds(op[1]); op[2].idx = t.idx
    elif k == "mds":
        a(f"s_mov_b64 exec, {op[1]}")
        for ln, tok in zip(op[2], op[3]):
            t = a.ds(ln); tok.idx = t.idx
        a("s_mov_b64 exec, -1")
    elif k == "wait": a.wait(*op[1])
    elif k == "waitall": a.wait_all(op[1], op[2])
    elif k == "stamp": a.stamp(op[1])

class Merger:
    def __init__(self, a, rec):
        self.a, self.ops, self.pos, self.tick = a, rec.ops, 0, 0
    def step(self, budget):
        self.tick += 1
        n = 0
        while self.pos < len(self.ops) and n < budget:
            op = self.ops[self.pos]
            if op[0] == "gap":
                self.ops[self.pos] = ("at", self.tick + op[1])
                continue
            if op[0] == "at":
                if op[1] > self.tick:
                    return
                self.pos += 1
                continue
            play(self.a, op)
            self.pos += 1
            n += 1
    def drain(self):
        while self.pos < len(self.ops):
            op = self.ops[self.pos]
            if op[0] not in ("at", "gap"):
                play(self.a, op)
            self.pos += 1

def masked_ds(a, mask, lines):
    if isinstance(a, Rec):
        return a.masked_ds(mask, lines)
    a(f"s_mov_b64 exec, {mask}")
    toks = [a.ds(ln) for ln in lines]
    a("s_mov_b64 exec, -1")
    return toks
```

```python
from asmlib import *
from asmlib import STAMP
from layout import *

N_SORT, N_REF, N_GEMM = 50, 6, 200
PREP_LDS = 131072
PREP_GRID = N_SORT + N_REF + N_GEMM

S_H, S_POS, S_EA, S_SRC, S_DST, S_WE, S_WX, S_WH, S_WS = 4, 6, 8, 10, 12, 14, 16, 18, 20
S_WAVE = 22
SRD_A, SRD_B, SRD_C, SRD_D, SRD_E = 24, 28, 32, 36, 40

def w_slice_dma(a, srd, s_ch):
    a(f"""
    v_lshrrev_b32 v2, 4, v1
    v_bfe_u32 v3, v1, 1, 3
    v_xor_b32 v3, v3, v2
    v_lshlrev_b32 v3, 5, v3
    v_lshl_add_u32 v3, v2, 9, v3
    v_and_b32 v4, 1, v1
    v_lshl_add_u32 v3, v4, 4, v3
    v_xor_b32 v4, 0x80, v3
    s_lshl_b32 s44, s{S_WAVE}, 14
    s_lshl_b32 s45, s{s_ch}, 8
    s_add_u32 s44, s44, s45
    s_lshl_b32 s45, s{S_WAVE}, 13
    """)
    toks = []
    for u in range(8):
        z = (u >> 1) & 1
        a(f"s_add_u32 m0, s45, {u*1024}")
        if u:
            a(f"s_add_u32 s44, s44, 2048")
        else:
            a("s_nop 0")
        toks.append(a.vm(f"buffer_load_dwordx4 v{3+z}, s[{srd}:{srd+3}], s44 offen lds"))
    return toks

def tr_addr_16(a, dst, seg_s, seg_add):
    a(f"""
    v_lshrrev_b32 v10, 4, v1
    v_bfe_u32 v11, v1, 2, 2
    v_and_b32 v12, 1, v10
    v_lshl_or_b32 v12, v12, 2, v11
    s_add_u32 s46, s{seg_s}, {seg_add}
    v_xor_b32 v12, s46, v12
    v_lshlrev_b32 v12, 5, v12
    v_lshl_add_u32 v13, v10, 3, v11
    v_lshl_add_u32 v12, v13, 8, v12
    v_and_b32 v13, 3, v1
    v_lshl_add_u32 v{dst}, v13, 3, v12
    """)

def gemm_role(a):
    a.comment("---- B' = -log2e * (h @ W2): 100 rows x 128 columns per workgroup")
    a(f"""
    s_sub_u32 s3, s2, {N_SORT + N_REF}
    s_lshr_b32 s48, s3, 1
    s_and_b32 s49, s3, 1
    s_mul_i32 s50, s48, {100*512}
    """)
    a.srd(SRD_A, S_WE, 256*512, 256*512)
    a.srd(SRD_B, S_H, 0, N*512)
    a(f"s_add_u32 s51, s50, {WS_BT}")
    a.srd(SRD_C, S_WS, "s51", 100*512)
    w_slice_dma(a, SRD_A, 49)
    a(f"""
    v_lshrrev_b32 v5, 5, v1
    s_lshl_b32 s46, s{S_WAVE}, 1
    v_add_u32 v6, s46, v5
    v_and_b32 v7, 31, v1
    v_xor_b32 v6, v6, v7
    v_lshlrev_b32 v6, 4, v6
    v_lshl_add_u32 v6, v5, 9, v6
    s_lshl_b32 s46, s{S_WAVE}, 10
    s_add_u32 s47, s50, s46
    s_add_u32 s46, s46, 65536
    """)
    for u in range(7):
        a(f"s_add_u32 m0, s46, {u*8192}")
        if u:
            a(f"s_add_u32 s47, s47, 8192")
        else:
            a("s_nop 0")
        a.vm(f"buffer_load_dwordx4 v6, s[{SRD_B}:{SRD_B+3}], s47 offen lds")
    a(f"""
    s_and_b32 s52, s{S_WAVE}, 3
    s_lshr_b32 s53, s{S_WAVE}, 2
    s_lshl_b32 s54, s52, 1
    """)
    VA0, VA1, VB = 14, 15, 16
    tr_addr_16(a, VA0, 54, 0)
    tr_addr_16(a, VA1, 54, 1)
    a(f"""
    v_and_b32 v10, 15, v1
    v_lshrrev_b32 v11, 4, v1
    v_xor_b32 v11, v11, v10
    s_lshl_b32 s46, s53, 15
    s_add_u32 s46, s46, 65536
    v_lshl_add_u32 v12, v10, 9, s46
    """)
    for k in range(4):
        a(f"v_xor_b32 v13, {4*k}, v11\nv_lshl_add_u32 v{VB+k}, v13, 4, v12")
    VO = 20
    a(f"""
    v_lshrrev_b32 v11, 4, v1
    v_and_b32 v13, 1, v11
    v_lshlrev_b32 v13, 5, v13
    v_lshrrev_b32 v11, 1, v11
    v_lshl_add_u32 v13, v11, 4, v13
    v_lshl_add_u32 v13, v10, 9, v13
    s_lshl_b32 s46, s49, 8
    s_lshl_b32 s47, s52, 6
    s_add_u32 s46, s46, s47
    v_add_u32 v{VO}, s46, v13
    s_lshl_b32 s55, s53, 15
    """)
    a.wait_all(lgkm=False)
    a("s_barrier")
    a.stamp(1)
    ACC = 24
    BUF = [56, 80]
    def issue(s):
        b = BUF[s & 1]
        for mi, va in enumerate((VA0, VA1)):
            for t in range(2):
                a.ds(f"ds_read_b64_tr_b16 v[{b+4*mi+2*t}:{b+4*mi+2*t+1}], v{va} offset:{s*8192+t*1024}")
        tok = None
        for nbi in range(4):
            tok = a.ds(f"ds_read_b128 v[{b+8+4*nbi}:{b+8+4*nbi+3}], v{VB+(s&3)} offset:{nbi*8192+(s>>2)*256}")
        return tok
    tok = issue(0)
    for s in range(8):
        a.wait(tok)
        if s < 7:
            tok = issue(s + 1)
        b = BUF[s & 1]
        for nbi in range(4):
            for mi in range(2):
                d = ACC + (mi*4 + nbi)*4
                c = "0" if s == 0 else f"v[{d}:{d+3}]"
                a(f"v_mfma_f32_16x16x32_bf16 v[{d}:{d+3}], v[{b+4*mi}:{b+4*mi+3}], v[{b+8+4*nbi}:{b+8+4*nbi+3}], {c}")
    a(f"s_mov_b32 s46, {hex(NEG_LOG2E)}\ns_mov_b32 s47, s46\ns_nop 7")
    for nbi in range(4):
        for mi in range(2):
            d = ACC + (mi*4 + nbi)*4
            for p in range(2):
                a(f"v_pk_mul_f32 v[{d+2*p}:{d+2*p+1}], v[{d+2*p}:{d+2*p+1}], s[46:47]")
        T = 56 + 4*nbi
        d0, d1 = ACC + nbi*4, ACC + (4 + nbi)*4
        a(f"""
        v_cvt_pk_bf16_f32 v{T}, v{d0}, v{d0+1}
        v_cvt_pk_bf16_f32 v{T+1}, v{d0+2}, v{d0+3}
        v_cvt_pk_bf16_f32 v{T+2}, v{d1}, v{d1+1}
        v_cvt_pk_bf16_f32 v{T+3}, v{d1+2}, v{d1+3}
        s_nop 1
        v_permlane16_swap_b32 v{T}, v{T+2}
        v_permlane16_swap_b32 v{T+1}, v{T+3}
        """)
        a.vm(f"buffer_store_dwordx4 v[{T}:{T+3}], v{VO}, s[{SRD_C}:{SRD_C+3}], s55 offen sc1")
        if nbi < 3:
            a("s_add_u32 s55, s55, 8192")
    if STAMP[0]:
        a("s_waitcnt vmcnt(0)")
    a.stamp(2)
    a.stamp_flush(S_WS, 0x800000, 3, S_WAVE, 120)
    a("s_endpgm")

def sort_role(a):
    a.comment("---- counting sort of one 3200-edge chunk by destination bucket")
    CNT, START, R4, R8 = 0, 1024, 2048, 16384
    NR = 7
    a(f"""
    s_mul_i32 s48, s2, {CH*4}
    s_mul_i32 s49, s2, {CH*8}
    """)
    a.srd(SRD_A, S_DST, "s48", CH*4)
    a.srd(SRD_B, S_SRC, "s48", CH*4)
    a.srd(SRD_C, S_EA, "s49", CH*8)
    a("v_lshlrev_b32 v2, 2, v0\nv_lshlrev_b32 v3, 3, v0")
    VD, VS, VE = 8, 16, 24
    tk = []
    for r in range(NR):
        a(f"s_movk_i32 s46, {r*2048}\ns_movk_i32 s47, {r*4096}")
        a.vm(f"buffer_load_dword v{VD+r}, v2, s[{SRD_A}:{SRD_A+3}], s46 offen")
        a.vm(f"buffer_load_dword v{VS+r}, v2, s[{SRD_B}:{SRD_B+3}], s46 offen")
        tk.append(a.vm(f"buffer_load_dwordx2 v[{VE+2*r}:{VE+2*r+1}], v3, s[{SRD_C}:{SRD_C+3}], s47 offen"))
    a(f"s_mul_i32 s50, s2, {200*6}\ns_mul_i32 s51, s2, {200*8}\ns_add_u32 s51, s51, {WS_POSP}")
    a.srd(SRD_D, S_POS, "s50", 200*6)
    a.srd(SRD_E, S_WS, "s51", 200*8)
    a("v_mul_u32_u24 v4, 6, v0")
    for c in range(3):
        tp = a.vm(f"buffer_load_ushort v{40+c}, v4, s[{SRD_D}:{SRD_D+3}], 0 offen offset:{2*c}")
    a(f"""
    v_mov_b32 v5, 0
    v_cmp_gt_u32 vcc, 256, v0
    s_and_saveexec_b64 s[52:53], vcc
    s_cbranch_execz L_sort_zero_done
    """)
    a.ds(f"ds_write_b32 v2, v5 offset:{CNT}")
    a.label("L_sort_zero_done")
    a("s_mov_b64 exec, s[52:53]")
    a.wait_all(vm=False)
    a("s_barrier")
    a.wait(tk[0])
    a.stamp(1)
    VB, VK = 44, 52
    a("s_mov_b32 s46, 52429\nv_mov_b32 v6, 1")
    for r in range(NR):
        if r == NR - 1:
            a(f"s_cmp_ge_u32 s{S_WAVE}, 2\ns_cbranch_scc1 L_sort_r6a")
        a.wait(tk[r])
        a(f"""
        v_mul_u32_u24 v5, s46, v{VD+r}
        v_lshrrev_b32 v5, 21, v5
        v_mul_u32_u24 v7, 40, v5
        v_sub_u32 v7, v{VD+r}, v7
        v_lshl_add_u32 v{VS+r}, v{VS+r}, 9, v7
        v_lshlrev_b32 v{VB+r}, 2, v5
        """)
        a.ds(f"ds_add_rtn_u32 v{VK+r}, v{VB+r}, v6 offset:{CNT}")
    a.label("L_sort_r6a")
    a.wait(tp)
    a(f"""
    v_lshl_or_b32 v40, v41, 16, v40
    v_mov_b32 v41, v42
    """)
    a.vm(f"buffer_store_dwordx2 v[40:41], v3, s[{SRD_E}:{SRD_E+3}], 0 offen sc1")
    a.wait_all(vm=False)
    a("s_barrier")
    a(f"s_cmp_lg_u32 s{S_WAVE}, 0\ns_cbranch_scc1 L_sort_scan_done")
    a("v_lshlrev_b32 v4, 4, v1")
    a.ds(f"ds_read_b128 v[60:63], v4 offset:{CNT}")
    a.wait_all(vm=False)
    a("""
    v_add_u32 v65, v60, v61
    v_add_u32 v66, v65, v62
    v_add_u32 v67, v66, v63
    v_mov_b32 v68, v67
    s_nop 1
    v_add_u32_dpp v68, v68, v68 row_shr:1 row_mask:0xf bank_mask:0xf bound_ctrl:0
    s_nop 1
    v_add_u32_dpp v68, v68, v68 row_shr:2 row_mask:0xf bank_mask:0xf bound_ctrl:0
    s_nop 1
    v_add_u32_dpp v68, v68, v68 row_shr:4 row_mask:0xf bank_mask:0xf bound_ctrl:0
    s_nop 1
    v_add_u32_dpp v68, v68, v68 row_shr:8 row_mask:0xf bank_mask:0xf bound_ctrl:0
    s_nop 1
    v_add_u32_dpp v68, v68, v68 row_bcast:15 row_mask:0xa bank_mask:0xf
    s_nop 1
    v_add_u32_dpp v68, v68, v68 row_bcast:31 row_mask:0xc bank_mask:0xf
    v_sub_u32 v72, v68, v67
    v_add_u32 v73, v72, v60
    v_add_u32 v74, v72, v65
    v_add_u32 v75, v72, v66
    """)
    a.ds(f"ds_write_b128 v4, v[72:75] offset:{START}")
    a(f"s_lshl_b32 s50, s2, 2\ns_add_u32 s50, s50, {WS_OFFS}")
    a.srd(SRD_D, S_WS, "s50", NB*256 - 200)
    a("v_lshlrev_b32 v5, 10, v1")
    for i in range(4):
        a(f"v_lshl_or_b32 v{76+i}, v{60+i}, 16, v{72+i}")
        a.vm(f"buffer_store_dword v{76+i}, v5, s[{SRD_D}:{SRD_D+3}], 0 offen offset:{i*256} sc1")
    a.wait_all(vm=False)
    a.label("L_sort_scan_done")
    a("s_barrier")
    VP = 60
    toks = []
    for r in range(NR):
        if r == NR - 1:
            a(f"s_cmp_ge_u32 s{S_WAVE}, 2\ns_cbranch_scc1 L_sort_r6b")
        toks.append(a.ds(f"ds_read_b32 v{VP+r}, v{VB+r} offset:{START}"))
    a.label("L_sort_r6b")
    a.wait_all(vm=False)
    for r in range(NR):
        if r == NR - 1:
            a(f"s_cmp_ge_u32 s{S_WAVE}, 2\ns_cbranch_scc1 L_sort_r6c")
        a(f"""
        v_add_u32 v5, v{VP+r}, v{VK+r}
        v_lshlrev_b32 v7, 3, v5
        v_lshlrev_b32 v5, 2, v5
        """)
        a.ds(f"ds_write_b32 v5, v{VS+r} offset:{R4}")
        a.ds(f"ds_write_b64 v7, v[{VE+2*r}:{VE+2*r+1}] offset:{R8}")
    a.label("L_sort_r6c")
    a.wait_all(vm=False)
    a("s_barrier")
    a(f"s_add_u32 s50, s48, {WS_REC4}\ns_add_u32 s51, s49, {WS_REC8}")
    a.srd(SRD_A, S_WS, "s50", CH*4)
    a.srd(SRD_B, S_WS, "s51", CH*8)
    a("v_lshlrev_b32 v4, 4, v0")
    outs = [(R4, SRD_A, 0), (R4, SRD_A, 8192), (R8, SRD_B, 0), (R8, SRD_B, 8192), (R8, SRD_B, 16384), (R8, SRD_B, 24576)]
    toks = [a.ds(f"ds_read_b128 v[{80+4*i}:{83+4*i}], v4 offset:{base+off}") for i, (base, srd, off) in enumerate(outs)]
    for i, (base, srd, off) in enumerate(outs):
        a(f"s_movk_i32 s46, {off}")
        a.wait(toks[i])
        a.vm(f"buffer_store_dwordx4 v[{80+4*i}:{83+4*i}], v4, s[{srd}:{srd+3}], s46 offen sc1")
    if STAMP[0]:
        a("s_waitcnt vmcnt(0)")
    a.stamp(2)
    a.stamp_flush(S_WS, 0x800000, 3, S_WAVE, 120)
    a("s_endpgm")

def ref_role(a):
    a.comment("---- weight re-layout into MFMA fragment order, extras-weight split")
    a(f"""
    s_sub_u32 s3, s2, {N_SORT}
    s_lshr_b32 s48, s3, 1
    s_and_b32 s49, s3, 1
    s_cmp_eq_u32 s48, 0
    s_cselect_b32 s50, s{S_WE}, s{S_WH}
    s_cselect_b32 s51, s{S_WE+1}, s{S_WH+1}
    s_cmp_eq_u32 s48, 2
    s_cselect_b32 s52, {256*512}, 0
    """)
    a.srd(SRD_A, 50, "s52", 256*512)
    w_slice_dma(a, SRD_A, 49)
    a(f"""
    s_lshl_b32 s52, s48, 17
    s_add_u32 s52, s52, {WS_W1F}
    """)
    a.srd(SRD_B, S_WS, "s52", 131072)
    a(f"""
    s_cmp_lg_u32 s48, 0
    s_cbranch_scc1 L_ref_nowx
    s_cmp_ge_u32 s{S_WAVE}, 4
    s_cbranch_scc1 L_ref_nowx
    """)
    a.srd(SRD_C, S_WE, 512*512, 5*512)
    a.srd(SRD_D, S_WS, WS_WXF, 4096)
    a(f"""
    s_lshl_b32 s46, s49, 2
    s_add_u32 s46, s46, s{S_WAVE}
    v_and_b32 v20, 31, v1
    s_lshl_b32 s47, s46, 6
    v_lshl_add_u32 v20, v20, 1, s47
    """)
    for k in range(5):
        t = a.vm(f"buffer_load_ushort v{22+k}, v20, s[{SRD_C}:{SRD_C+3}], 0 offen offset:{k*512}")
    a.wait(t)
    a(f"s_mov_b32 s47, {hex(NEG_LOG2E)}")
    for k in range(5):
        a(f"""
        v_lshlrev_b32 v{22+k}, 16, v{22+k}
        v_mul_f32 v{22+k}, s47, v{22+k}
        v_cvt_pk_bf16_f32 v{28+k}, v{22+k}, v{22+k}
        v_and_b32 v27, 0xffff0000, v{28+k}
        v_sub_f32 v27, v{22+k}, v27
        v_cvt_pk_bf16_f32 v{34+k}, v27, v27
        """)
    a("""
    s_mov_b32 s47, 0xffff
    v_and_b32 v40, s47, v29
    v_lshl_or_b32 v40, v30, 16, v40
    v_and_b32 v41, s47, v31
    v_lshl_or_b32 v41, v32, 16, v41
    v_and_b32 v42, s47, v28
    v_lshl_or_b32 v42, v34, 16, v42
    v_and_b32 v43, s47, v35
    v_lshl_or_b32 v43, v36, 16, v43
    v_cmp_gt_u32 vcc, 32, v1
    s_nop 1
    v_cndmask_b32 v44, v42, v40, vcc
    v_cndmask_b32 v45, v43, v41, vcc
    v_lshlrev_b32 v20, 3, v1
    s_lshl_b32 s46, s46, 9
    """)
    a.vm(f"buffer_store_dwordx2 v[44:45], v20, s[{SRD_D}:{SRD_D+3}], s46 offen sc1")
    a.label("L_ref_nowx")
    a.wait_all(lgkm=False)
    a("s_barrier")
    a("v_lshlrev_b32 v21, 4, v1")
    a("s_cmp_lg_u32 s48, 0\ns_cbranch_scc1 L_ref_k16")
    a(f"""
    s_lshr_b32 s52, s{S_WAVE}, 2
    s_bfe_u32 s53, s{S_WAVE}, 0x10001
    s_and_b32 s54, s{S_WAVE}, 1
    s_lshl_b32 s55, s52, 2
    s_lshl_b32 s56, s53, 1
    s_add_u32 s55, s55, s56
    v_lshrrev_b32 v10, 5, v1
    v_bfe_u32 v11, v1, 4, 1
    v_bfe_u32 v12, v1, 2, 2
    v_lshl_or_b32 v13, v10, 2, v12
    v_add_u32 v11, s55, v11
    v_xor_b32 v11, v11, v13
    v_lshlrev_b32 v11, 5, v11
    v_lshl_add_u32 v13, v10, 3, v12
    v_lshl_add_u32 v11, v13, 8, v11
    v_and_b32 v13, 3, v1
    v_lshl_add_u32 v11, v13, 3, v11
    s_lshl_b32 s56, s54, 15
    v_add_u32 v11, s56, v11
    s_lshl_b32 s56, s49, 1
    s_add_u32 s56, s56, s52
    s_lshl_b32 s56, s56, 4
    s_lshl_b32 s57, s54, 3
    s_add_u32 s56, s56, s57
    s_lshl_b32 s56, s56, 1
    s_add_u32 s56, s56, s53
    s_lshl_b32 s56, s56, 10
    """)
    toks = []
    for s in range(8):
        a.ds(f"ds_read_b64_tr_b16 v[{24+4*s}:{25+4*s}], v11 offset:{s*4096}")
        toks.append(a.ds(f"ds_read_b64_tr_b16 v[{26+4*s}:{27+4*s}], v11 offset:{s*4096+1024}"))
        if s == 6:
            a.wait(toks[0])
    for s in range(8):
        a.wait(toks[s])
        a.vm(f"buffer_store_dwordx4 v[{24+4*s}:{27+4*s}], v21, s[{SRD_B}:{SRD_B+3}], s56 offen sc1")
        if s < 7:
            a("s_add_u32 s56, s56, 2048")
    a("s_endpgm")
    a.label("L_ref_k16")
    a.n["lgkm"] = a.done["lgkm"] = 0
    a(f"""
    s_lshr_b32 s52, s{S_WAVE}, 2
    s_and_b32 s53, s{S_WAVE}, 3
    s_lshl_b32 s55, s52, 2
    s_add_u32 s55, s55, s53
    """)
    tr_addr_16(a, 11, 55, 0)
    a(f"""
    s_lshl_b32 s56, s49, 1
    s_add_u32 s56, s56, s52
    s_lshl_b32 s56, s56, 5
    s_add_u32 s56, s56, s53
    s_lshl_b32 s56, s56, 10
    """)
    toks = []
    for s in range(8):
        a.ds(f"ds_read_b64_tr_b16 v[{24+4*s}:{25+4*s}], v11 offset:{s*8192}")
        toks.append(a.ds(f"ds_read_b64_tr_b16 v[{26+4*s}:{27+4*s}], v11 offset:{s*8192+1024}"))
        if s == 6:
            a.wait(toks[0])
    for s in range(8):
        a.wait(toks[s])
        a.vm(f"buffer_store_dwordx4 v[{24+4*s}:{27+4*s}], v21, s[{SRD_B}:{SRD_B+3}], s56 offen sc1")
        if s < 7:
            a("s_add_u32 s56, s56, 4096")
    a("s_endpgm")

def entry(a):
    a(f"""
    s_load_dwordx16 s[4:19], s[0:1], 0
    s_load_dwordx2 s[20:21], s[0:1], 80
    v_and_b32 v1, 63, v0
    v_lshrrev_b32 v2, 6, v0
    s_nop 0
    v_readfirstlane_b32 s{S_WAVE}, v2
    s_waitcnt lgkmcnt(0)
    """)
    a.stamp(0)

def prep_kernel(name):
    a = Asm()
    a.raw(f".globl {name}\n.p2align 8\n.type {name},@function\n{name}:")
    a(f"""
    s_cmp_lt_u32 s2, {N_SORT}
    s_cbranch_scc1 L_prep_sort
    s_cmp_lt_u32 s2, {N_SORT + N_REF}
    s_cbranch_scc1 L_prep_ref
    s_cmp_ge_u32 s2, {PREP_GRID}
    s_cbranch_scc1 L_prep_exit
    """)
    entry(a)
    gemm_role(a)
    a.label("L_prep_sort")
    a.n = {"vm": 0, "lgkm": 0}; a.done = {"vm": 0, "lgkm": 0}
    entry(a)
    sort_role(a)
    a.label("L_prep_ref")
    a.n = {"vm": 0, "lgkm": 0}; a.done = {"vm": 0, "lgkm": 0}
    entry(a)
    ref_role(a)
    a.label("L_prep_exit")
    a("s_endpgm")
    return a.text()
```

```python
from asmlib import *
from asmlib import STAMP
from layout import *
import os

N_SORT, N_REF, N_GEMM = 50, 6, 200
PREP_LDS = 163840 if os.environ.get('G2', '0') == '1' else 131072
PREP_GRID = N_SORT + N_REF + N_GEMM

S_H, S_POS, S_EA, S_SRC, S_DST, S_WE, S_WX, S_WH, S_WS = 4, 6, 8, 10, 12, 14, 16, 18, 20
S_WAVE = 22
SRD_A, SRD_B, SRD_C, SRD_D, SRD_E = 24, 28, 32, 36, 40

def w_slice_dma(a, srd, s_ch):
    a(f"""
    v_lshrrev_b32 v2, 4, v1
    v_bfe_u32 v3, v1, 1, 3
    v_xor_b32 v3, v3, v2
    v_lshlrev_b32 v3, 5, v3
    v_lshl_add_u32 v3, v2, 9, v3
    v_and_b32 v4, 1, v1
    v_lshl_add_u32 v3, v4, 4, v3
    v_xor_b32 v4, 0x80, v3
    s_lshl_b32 s44, s{S_WAVE}, 14
    s_lshl_b32 s45, s{s_ch}, 8
    s_add_u32 s44, s44, s45
    s_lshl_b32 s45, s{S_WAVE}, 13
    """)
    toks = []
    for u in range(8):
        z = (u >> 1) & 1
        a(f"s_add_u32 m0, s45, {u*1024}")
        if u:
            a(f"s_add_u32 s44, s44, 2048")
        else:
            a("s_nop 0")
        if not os.environ.get('NOW'):
            toks.append(a.vm(f"buffer_load_dwordx4 v{3+z}, s[{srd}:{srd+3}], s44 offen lds"))
    return toks

def tr_addr_16(a, dst, seg_s, seg_add):
    a(f"""
    v_lshrrev_b32 v10, 4, v1
    v_bfe_u32 v11, v1, 2, 2
    v_and_b32 v12, 1, v10
    v_lshl_or_b32 v12, v12, 2, v11
    s_add_u32 s46, s{seg_s}, {seg_add}
    v_xor_b32 v12, s46, v12
    v_lshlrev_b32 v12, 5, v12
    v_lshl_add_u32 v13, v10, 3, v11
    v_lshl_add_u32 v12, v13, 8, v12
    v_and_b32 v13, 3, v1
    v_lshl_add_u32 v{dst}, v13, 3, v12
    """)

def gemm_role(a):
    a.comment("---- B' = -log2e * (h @ W2): 100 rows x 128 columns per workgroup")
    a(f"""
    s_sub_u32 s3, s2, {N_SORT + N_REF}
    s_lshr_b32 s48, s3, 4
    s_lshl_b32 s48, s48, 3
    s_and_b32 s49, s3, 7
    s_add_u32 s48, s48, s49
    s_bfe_u32 s49, s3, 0x10003
    s_sub_u32 s50, s3, 192
    s_and_b32 s51, s50, 3
    s_add_u32 s51, s51, 96
    s_lshr_b32 s50, s50, 2
    s_cmp_ge_u32 s3, 192
    s_cselect_b32 s48, s51, s48
    s_cselect_b32 s49, s50, s49
    s_mul_i32 s50, s48, {100*512}
    """) if os.environ.get('PAIR', '1') == '1' else a(f"""
    s_sub_u32 s3, s2, {N_SORT + N_REF}
    s_lshr_b32 s48, s3, 1
    s_and_b32 s49, s3, 1
    s_mul_i32 s50, s48, {100*512}
    """)
    a.srd(SRD_A, S_WE, 256*512, 256*512)
    a.srd(SRD_B, S_H, 0, N*512)
    a(f"s_add_u32 s51, s50, {WS_BT}")
    a.srd(SRD_C, S_WS, "s51", 100*512)
    if os.environ.get('HFIRST', '1') == '1':
        a(f"""
        v_lshrrev_b32 v5, 5, v1
        s_lshl_b32 s46, s{S_WAVE}, 1
        v_add_u32 v6, s46, v5
        v_and_b32 v7, 31, v1
        v_xor_b32 v6, v6, v7
        v_lshlrev_b32 v6, 4, v6
        v_lshl_add_u32 v6, v5, 9, v6
        s_lshl_b32 s46, s{S_WAVE}, 10
        s_add_u32 s47, s50, s46
        s_add_u32 s46, s46, 65536
        """)
        for u in range(7):
            a(f"s_add_u32 m0, s46, {u*8192}")
            if u:
                a(f"s_add_u32 s47, s47, 8192")
            else:
                a("s_nop 0")
            if not os.environ.get('NOH'):
                a.vm(f"buffer_load_dwordx4 v6, s[{SRD_B}:{SRD_B+3}], s47 offen lds" + (" nt" if os.environ.get('HNT') else ""))
        w_slice_dma(a, SRD_A, 49)
    else:
        w_slice_dma(a, SRD_A, 49)
        a(f"""
        v_lshrrev_b32 v5, 5, v1
        s_lshl_b32 s46, s{S_WAVE}, 1
        v_add_u32 v6, s46, v5
        v_and_b32 v7, 31, v1
        v_xor_b32 v6, v6, v7
        v_lshlrev_b32 v6, 4, v6
        v_lshl_add_u32 v6, v5, 9, v6
        s_lshl_b32 s46, s{S_WAVE}, 10
        s_add_u32 s47, s50, s46
        s_add_u32 s46, s46, 65536
        """)
        for u in range(7):
            a(f"s_add_u32 m0, s46, {u*8192}")
            if u:
                a(f"s_add_u32 s47, s47, 8192")
            else:
                a("s_nop 0")
            if not os.environ.get('NOH'):
                a.vm(f"buffer_load_dwordx4 v6, s[{SRD_B}:{SRD_B+3}], s47 offen lds" + (" nt" if os.environ.get('HNT') else ""))
    a.stamp(3)
    a(f"""
    s_and_b32 s52, s{S_WAVE}, 3
    s_lshr_b32 s53, s{S_WAVE}, 2
    s_lshl_b32 s54, s52, 1
    """)
    VA0, VA1, VB = 14, 15, 16
    tr_addr_16(a, VA0, 54, 0)
    tr_addr_16(a, VA1, 54, 1)
    a(f"""
    v_and_b32 v10, 15, v1
    v_lshrrev_b32 v11, 4, v1
    v_xor_b32 v11, v11, v10
    s_lshl_b32 s46, s53, 15
    s_add_u32 s46, s46, 65536
    v_lshl_add_u32 v12, v10, 9, s46
    """)
    for k in range(4):
        a(f"v_xor_b32 v13, {4*k}, v11\nv_lshl_add_u32 v{VB+k}, v13, 4, v12")
    VO = 20
    a(f"""
    v_lshrrev_b32 v11, 4, v1
    v_and_b32 v13, 1, v11
    v_lshlrev_b32 v13, 5, v13
    v_lshrrev_b32 v11, 1, v11
    v_lshl_add_u32 v13, v11, 4, v13
    v_lshl_add_u32 v13, v10, 9, v13
    s_lshl_b32 s46, s49, 8
    s_lshl_b32 s47, s52, 6
    s_add_u32 s46, s46, s47
    v_add_u32 v{VO}, s46, v13
    s_lshl_b32 s55, s53, 15
    """)
    a.wait_all(lgkm=False)
    a("s_barrier")
    a.stamp(1)
    ACC = 24
    BUF = [56, 80]
    def issue(s):
        b = BUF[s & 1]
        for mi, va in enumerate((VA0, VA1)):
            for t in range(2):
                a.ds(f"ds_read_b64_tr_b16 v[{b+4*mi+2*t}:{b+4*mi+2*t+1}], v{va} offset:{s*8192+t*1024}")
        tok = None
        for nbi in range(4):
            tok = a.ds(f"ds_read_b128 v[{b+8+4*nbi}:{b+8+4*nbi+3}], v{VB+(s&3)} offset:{nbi*8192+(s>>2)*256}")
        return tok
    tok = issue(0)
    for s in range(8):
        a.wait(tok)
        if s < 7:
            tok = issue(s + 1)
        b = BUF[s & 1]
        for nbi in range(4):
            for mi in range(2):
                d = ACC + (mi*4 + nbi)*4
                c = "0" if s == 0 else f"v[{d}:{d+3}]"
                a(f"v_mfma_f32_16x16x32_bf16 v[{d}:{d+3}], v[{b+4*mi}:{b+4*mi+3}], v[{b+8+4*nbi}:{b+8+4*nbi+3}], {c}")
    a.stamp(4)
    a(f"s_mov_b32 s46, {hex(NEG_LOG2E)}\ns_mov_b32 s47, s46\ns_nop 7")
    for nbi in range(4):
        for mi in range(2):
            d = ACC + (mi*4 + nbi)*4
            for p in range(2):
                a(f"v_pk_mul_f32 v[{d+2*p}:{d+2*p+1}], v[{d+2*p}:{d+2*p+1}], s[46:47]")
        T = 56 + 4*nbi
        d0, d1 = ACC + nbi*4, ACC + (4 + nbi)*4
        a(f"""
        v_cvt_pk_bf16_f32 v{T}, v{d0}, v{d0+1}
        v_cvt_pk_bf16_f32 v{T+1}, v{d0+2}, v{d0+3}
        v_cvt_pk_bf16_f32 v{T+2}, v{d1}, v{d1+1}
        v_cvt_pk_bf16_f32 v{T+3}, v{d1+2}, v{d1+3}
        s_nop 1
        v_permlane16_swap_b32 v{T}, v{T+2}
        v_permlane16_swap_b32 v{T+1}, v{T+3}
        """)
        a.vm(f"buffer_store_dwordx4 v[{T}:{T+3}], v{VO}, s[{SRD_C}:{SRD_C+3}], s55 offen sc1")
        if nbi < 3:
            a("s_add_u32 s55, s55, 8192")
    if STAMP[0]:
        a("s_waitcnt vmcnt(0)")
    a.stamp(2)
    a.stamp_flush(S_WS, 0x800000, 8, S_WAVE, 120)
    a("s_endpgm")

def gemm_role2(a):
    a.comment("---- B' = -log2e * (h @ W2): 50 rows x 256 columns per workgroup, two K halves")
    HT = 131072
    a(f"""
    s_sub_u32 s3, s2, {N_SORT + N_REF}
    s_mul_i32 s50, s3, {50*512}
    """)
    a.srd(SRD_A, S_WE, 256*512, 256*512)
    a.srd(SRD_B, S_H, 0, N*512)
    a(f"s_add_u32 s51, s50, {WS_BT}")
    a.srd(SRD_C, S_WS, "s51", 50*512)
    a(f"""
    v_lshrrev_b32 v5, 5, v1
    s_lshl_b32 s46, s{S_WAVE}, 1
    v_add_u32 v6, s46, v5
    v_and_b32 v7, 31, v1
    v_xor_b32 v6, v6, v7
    v_lshlrev_b32 v6, 4, v6
    v_lshl_add_u32 v6, v5, 9, v6
    s_lshl_b32 s46, s{S_WAVE}, 10
    s_add_u32 s47, s50, s46
    s_add_u32 s45, s46, {HT}
    """)
    for u in range(3):
        a(f"s_add_u32 m0, s45, {u*8192}")
        a("s_add_u32 s47, s47, 8192" if u else "s_nop 0")
        a.vm(f"buffer_load_dwordx4 v6, s[{SRD_B}:{SRD_B+3}], s47 offen lds")
    a(f"s_cmp_lg_u32 s{S_WAVE}, 0\ns_cbranch_scc1 L_g2_noh")
    a(f"s_add_u32 m0, s45, {3*8192}\ns_add_u32 s47, s47, 8192")
    a(f"buffer_load_dwordx4 v6, s[{SRD_B}:{SRD_B+3}], s47 offen lds")
    a.label("L_g2_noh")
    a(f"""
    s_and_b32 s44, s{S_WAVE}, 1
    s_lshl_b32 s44, s44, 1
    s_bfe_u32 s47, s{S_WAVE}, 0x10002
    s_lshl_b32 s47, s47, 2
    s_or_b32 s44, s44, s47
    v_or_b32 v3, s44, v5
    v_bfe_u32 v4, v1, 1, 4
    v_xor_b32 v3, v3, v4
    v_lshlrev_b32 v3, 5, v3
    v_lshl_add_u32 v3, v5, 9, v3
    v_and_b32 v4, 1, v1
    v_lshl_add_u32 v3, v4, 4, v3
    s_mov_b32 s44, s46
    """)
    tw = []
    for u in range(16):
        a(f"s_add_u32 m0, s46, {u*8192}")
        a("s_add_u32 s44, s44, 8192" if u else "s_nop 0")
        tw.append(a.vm(f"buffer_load_dwordx4 v3, s[{SRD_A}:{SRD_A+3}], s44 offen lds"))
    a.stamp(3)
    a(f"s_lshl_b32 s54, s{S_WAVE}, 1")
    VA0, VA1, VB = 14, 15, 16
    for dst, add in ((VA0, 0), (VA1, 1)):
        a(f"""
        v_lshrrev_b32 v10, 4, v1
        v_bfe_u32 v11, v1, 2, 2
        v_and_b32 v12, 1, v10
        v_lshl_or_b32 v12, v12, 2, v11
        s_add_u32 s46, s54, {add}
        v_xor_b32 v12, s46, v12
        v_lshlrev_b32 v12, 5, v12
        v_lshl_add_u32 v13, v10, 3, v11
        v_lshl_add_u32 v12, v13, 9, v12
        v_and_b32 v13, 3, v1
        v_lshl_add_u32 v{dst}, v13, 3, v12
        v_add_u32 v{dst+8}, 0x10000, v{dst}
        """)
    a(f"""
    v_and_b32 v10, 15, v1
    v_lshrrev_b32 v11, 4, v1
    v_xor_b32 v11, v11, v10
    v_lshlrev_b32 v12, 9, v10
    v_add_u32 v12, {HT}, v12
    """)
    for k in range(4):
        a(f"v_xor_b32 v13, {4*k}, v11\nv_lshl_add_u32 v{VB+k}, v13, 4, v12")
    VO = 20
    a(f"""
    v_lshrrev_b32 v11, 4, v1
    v_and_b32 v13, 1, v11
    v_lshlrev_b32 v13, 5, v13
    v_lshrrev_b32 v11, 1, v11
    v_lshl_add_u32 v13, v11, 4, v13
    v_lshl_add_u32 v13, v10, 9, v13
    s_lshl_b32 s46, s{S_WAVE}, 6
    v_add_u32 v{VO}, s46, v13
    s_mov_b32 s55, 0
    """)
    ACC = 24
    BUF = [56, 80]
    def issue(s):
        b = BUF[s & 1]
        for mi, va in enumerate((VA0, VA1)):
            for t in range(2):
                reg = va if s < 4 else va + 8
                a.ds(f"ds_read_b64_tr_b16 v[{b+4*mi+2*t}:{b+4*mi+2*t+1}], v{reg} offset:{(s & 3)*16384 + t*2048}")
        tok = None
        for nbi in range(4):
            tok = a.ds(f"ds_read_b128 v[{b+8+4*nbi}:{b+8+4*nbi+3}], v{VB+(s&3)} offset:{nbi*8192+(s>>2)*256}")
        return tok
    a.wait(tw[7])
    a("s_barrier")
    a.stamp(1)
    tok = issue(0)
    for s in range(8):
        a.wait(tok)
        if s == 3:
            a.wait(tw[15])
            a("s_barrier")
        if s < 7:
            tok = issue(s + 1)
        b = BUF[s & 1]
        for nbi in range(4):
            for mi in range(2):
                d = ACC + (mi*4 + nbi)*4
                c = "0" if s == 0 else f"v[{d}:{d+3}]"
                a(f"v_mfma_f32_16x16x32_bf16 v[{d}:{d+3}], v[{b+4*mi}:{b+4*mi+3}], v[{b+8+4*nbi}:{b+8+4*nbi+3}], {c}")
    a.stamp(4)
    a(f"s_mov_b32 s46, {hex(NEG_LOG2E)}\ns_mov_b32 s47, s46\ns_nop 7")
    for nbi in range(4):
        for mi in range(2):
            d = ACC + (mi*4 + nbi)*4
            for p in range(2):
                a(f"v_pk_mul_f32 v[{d+2*p}:{d+2*p+1}], v[{d+2*p}:{d+2*p+1}], s[46:47]")
        T = 56 + 4*nbi
        d0, d1 = ACC + nbi*4, ACC + (4 + nbi)*4
        a(f"""
        v_cvt_pk_bf16_f32 v{T}, v{d0}, v{d0+1}
        v_cvt_pk_bf16_f32 v{T+1}, v{d0+2}, v{d0+3}
        v_cvt_pk_bf16_f32 v{T+2}, v{d1}, v{d1+1}
        v_cvt_pk_bf16_f32 v{T+3}, v{d1+2}, v{d1+3}
        s_nop 1
        v_permlane16_swap_b32 v{T}, v{T+2}
        v_permlane16_swap_b32 v{T+1}, v{T+3}
        """)
        a.vm(f"buffer_store_dwordx4 v[{T}:{T+3}], v{VO}, s[{SRD_C}:{SRD_C+3}], s55 offen sc1")
        if nbi < 3:
            a("s_add_u32 s55, s55, 8192")
    if STAMP[0]:
        a("s_waitcnt vmcnt(0)")
    a.stamp(2)
    a.stamp_flush(S_WS, 0x800000, 8, S_WAVE, 120)
    a("s_endpgm")

def sort_role(a):
    a.comment("---- counting sort of one 3200-edge chunk by destination bucket")
    CNT, START, R4, R8 = 0, 1024, 2048, 16384
    NR = 7
    a(f"""
    s_mul_i32 s48, s2, {CH*4}
    s_mul_i32 s49, s2, {CH*8}
    """)
    a.srd(SRD_A, S_DST, "s48", CH*4)
    a.srd(SRD_B, S_SRC, "s48", CH*4)
    a.srd(SRD_C, S_EA, "s49", CH*8)
    a("v_lshlrev_b32 v2, 2, v0\nv_lshlrev_b32 v3, 3, v0")
    VD, VS, VE = 8, 16, 24
    tk = []
    for r in range(NR):
        a(f"s_movk_i32 s46, {r*2048}\ns_movk_i32 s47, {r*4096}")
        a.vm(f"buffer_load_dword v{VD+r}, v2, s[{SRD_A}:{SRD_A+3}], s46 offen")
        a.vm(f"buffer_load_dword v{VS+r}, v2, s[{SRD_B}:{SRD_B+3}], s46 offen")
        tk.append(a.vm(f"buffer_load_dwordx2 v[{VE+2*r}:{VE+2*r+1}], v3, s[{SRD_C}:{SRD_C+3}], s47 offen"))
    a(f"s_mul_i32 s50, s2, {200*6}\ns_mul_i32 s51, s2, {200*8}\ns_add_u32 s51, s51, {WS_POSP}")
    a.srd(SRD_D, S_POS, "s50", 200*6)
    a.srd(SRD_E, S_WS, "s51", 200*8)
    a("v_mul_u32_u24 v4, 6, v0")
    for c in range(3):
        tp = a.vm(f"buffer_load_ushort v{40+c}, v4, s[{SRD_D}:{SRD_D+3}], 0 offen offset:{2*c}")
    a(f"""
    v_mov_b32 v5, 0
    v_cmp_gt_u32 vcc, 256, v0
    s_and_saveexec_b64 s[52:53], vcc
    s_cbranch_execz L_sort_zero_done
    """)
    a.ds(f"ds_write_b32 v2, v5 offset:{CNT}")
    a.label("L_sort_zero_done")
    a("s_mov_b64 exec, s[52:53]")
    a.wait_all(vm=False)
    a("s_barrier")
    a.wait(tk[0])
    a.stamp(1)
    VB, VK = 44, 52
    a("s_mov_b32 s46, 52429\nv_mov_b32 v6, 1")
    for r in range(NR):
        if r == NR - 1:
            a(f"s_cmp_ge_u32 s{S_WAVE}, 2\ns_cbranch_scc1 L_sort_r6a")
        a.wait(tk[r])
        a(f"""
        v_mul_u32_u24 v5, s46, v{VD+r}
        v_lshrrev_b32 v5, 21, v5
        v_mul_u32_u24 v7, 40, v5
        v_sub_u32 v7, v{VD+r}, v7
        v_lshl_add_u32 v{VS+r}, v{VS+r}, 9, v7
        v_lshlrev_b32 v{VB+r}, 2, v5
        """)
        a.ds(f"ds_add_rtn_u32 v{VK+r}, v{VB+r}, v6 offset:{CNT}")
    a.label("L_sort_r6a")
    a.stamp(3)
    a.wait(tp)
    a(f"""
    v_lshl_or_b32 v40, v41, 16, v40
    v_mov_b32 v41, v42
    """)
    a.vm(f"buffer_store_dwordx2 v[40:41], v3, s[{SRD_E}:{SRD_E+3}], 0 offen sc1")
    a.wait_all(vm=False)
    a("s_barrier")
    a(f"s_cmp_lg_u32 s{S_WAVE}, 0\ns_cbranch_scc1 L_sort_scan_done")
    a("v_lshlrev_b32 v4, 4, v1")
    a.ds(f"ds_read_b128 v[60:63], v4 offset:{CNT}")
    a.wait_all(vm=False)
    a("""
    v_add_u32 v65, v60, v61
    v_add_u32 v66, v65, v62
    v_add_u32 v67, v66, v63
    v_mov_b32 v68, v67
    s_nop 1
    v_add_u32_dpp v68, v68, v68 row_shr:1 row_mask:0xf bank_mask:0xf bound_ctrl:0
    s_nop 1
    v_add_u32_dpp v68, v68, v68 row_shr:2 row_mask:0xf bank_mask:0xf bound_ctrl:0
    s_nop 1
    v_add_u32_dpp v68, v68, v68 row_shr:4 row_mask:0xf bank_mask:0xf bound_ctrl:0
    s_nop 1
    v_add_u32_dpp v68, v68, v68 row_shr:8 row_mask:0xf bank_mask:0xf bound_ctrl:0
    s_nop 1
    v_add_u32_dpp v68, v68, v68 row_bcast:15 row_mask:0xa bank_mask:0xf
    s_nop 1
    v_add_u32_dpp v68, v68, v68 row_bcast:31 row_mask:0xc bank_mask:0xf
    v_sub_u32 v72, v68, v67
    v_add_u32 v73, v72, v60
    v_add_u32 v74, v72, v65
    v_add_u32 v75, v72, v66
    """)
    a.ds(f"ds_write_b128 v4, v[72:75] offset:{START}")
    a(f"s_lshl_b32 s50, s2, 2\ns_add_u32 s50, s50, {WS_OFFS}")
    a.srd(SRD_D, S_WS, "s50", NB*256 - 200)
    a("v_lshlrev_b32 v5, 10, v1")
    for i in range(4):
        a(f"v_lshl_or_b32 v{76+i}, v{60+i}, 16, v{72+i}")
        a.vm(f"buffer_store_dword v{76+i}, v5, s[{SRD_D}:{SRD_D+3}], 0 offen offset:{i*256} sc1")
    a.wait_all(vm=False)
    a.label("L_sort_scan_done")
    a("s_barrier")
    a.stamp(4)
    VP = 60
    toks = []
    for r in range(NR):
        if r == NR - 1:
            a(f"s_cmp_ge_u32 s{S_WAVE}, 2\ns_cbranch_scc1 L_sort_r6b")
        toks.append(a.ds(f"ds_read_b32 v{VP+r}, v{VB+r} offset:{START}"))
    a.label("L_sort_r6b")
    a.wait_all(vm=False)
    for r in range(NR):
        if r == NR - 1:
            a(f"s_cmp_ge_u32 s{S_WAVE}, 2\ns_cbranch_scc1 L_sort_r6c")
        a(f"""
        v_add_u32 v5, v{VP+r}, v{VK+r}
        v_lshlrev_b32 v7, 3, v5
        v_lshlrev_b32 v5, 2, v5
        """)
        a.ds(f"ds_write_b32 v5, v{VS+r} offset:{R4}")
        a.ds(f"ds_write_b64 v7, v[{VE+2*r}:{VE+2*r+1}] offset:{R8}")
    a.label("L_sort_r6c")
    a.wait_all(vm=False)
    a("s_barrier")
    a.stamp(5)
    a(f"s_add_u32 s50, s48, {WS_REC4}\ns_add_u32 s51, s49, {WS_REC8}")
    a.srd(SRD_A, S_WS, "s50", CH*4)
    a.srd(SRD_B, S_WS, "s51", CH*8)
    a("v_lshlrev_b32 v4, 4, v0")
    outs = [(R4, SRD_A, 0), (R4, SRD_A, 8192), (R8, SRD_B, 0), (R8, SRD_B, 8192), (R8, SRD_B, 16384), (R8, SRD_B, 24576)]
    toks = [a.ds(f"ds_read_b128 v[{80+4*i}:{83+4*i}], v4 offset:{base+off}") for i, (base, srd, off) in enumerate(outs)]
    for i, (base, srd, off) in enumerate(outs):
        a(f"s_movk_i32 s46, {off}")
        a.wait(toks[i])
        a.vm(f"buffer_store_dwordx4 v[{80+4*i}:{83+4*i}], v4, s[{srd}:{srd+3}], s46 offen sc1")
    if STAMP[0]:
        a("s_waitcnt vmcnt(0)")
    a.stamp(2)
    a.stamp_flush(S_WS, 0x800000, 8, S_WAVE, 120)
    a("s_endpgm")

def ref_role(a):
    a.comment("---- weight re-layout into MFMA fragment order, extras-weight split")
    a(f"""
    s_sub_u32 s3, s2, {N_SORT}
    s_lshr_b32 s48, s3, 1
    s_and_b32 s49, s3, 1
    s_cmp_eq_u32 s48, 0
    s_cselect_b32 s50, s{S_WE}, s{S_WH}
    s_cselect_b32 s51, s{S_WE+1}, s{S_WH+1}
    s_cmp_eq_u32 s48, 2
    s_cselect_b32 s52, {256*512}, 0
    """)
    a.srd(SRD_A, 50, "s52", 256*512)
    w_slice_dma(a, SRD_A, 49)
    a(f"""
    s_lshl_b32 s52, s48, 17
    s_add_u32 s52, s52, {WS_W1F}
    """)
    a.srd(SRD_B, S_WS, "s52", 131072)
    a(f"""
    s_cmp_lg_u32 s48, 0
    s_cbranch_scc1 L_ref_nowx
    s_cmp_ge_u32 s{S_WAVE}, 4
    s_cbranch_scc1 L_ref_nowx
    """)
    a.srd(SRD_C, S_WE, 512*512, 5*512)
    a.srd(SRD_D, S_WS, WS_WXF, 4096)
    a(f"""
    s_lshl_b32 s46, s49, 2
    s_add_u32 s46, s46, s{S_WAVE}
    v_and_b32 v20, 31, v1
    s_lshl_b32 s47, s46, 6
    v_lshl_add_u32 v20, v20, 1, s47
    """)
    for k in range(5):
        t = a.vm(f"buffer_load_ushort v{22+k}, v20, s[{SRD_C}:{SRD_C+3}], 0 offen offset:{k*512}")
    a.wait(t)
    a(f"s_mov_b32 s47, {hex(NEG_LOG2E)}")
    for k in range(5):
        a(f"""
        v_lshlrev_b32 v{22+k}, 16, v{22+k}
        v_mul_f32 v{22+k}, s47, v{22+k}
        v_cvt_pk_bf16_f32 v{28+k}, v{22+k}, v{22+k}
        v_and_b32 v27, 0xffff0000, v{28+k}
        v_sub_f32 v27, v{22+k}, v27
        v_cvt_pk_bf16_f32 v{34+k}, v27, v27
        """)
    a("""
    s_mov_b32 s47, 0xffff
    v_and_b32 v40, s47, v29
    v_lshl_or_b32 v40, v30, 16, v40
    v_and_b32 v41, s47, v31
    v_lshl_or_b32 v41, v32, 16, v41
    v_and_b32 v42, s47, v28
    v_lshl_or_b32 v42, v34, 16, v42
    v_and_b32 v43, s47, v35
    v_lshl_or_b32 v43, v36, 16, v43
    v_cmp_gt_u32 vcc, 32, v1
    s_nop 1
    v_cndmask_b32 v44, v42, v40, vcc
    v_cndmask_b32 v45, v43, v41, vcc
    v_lshlrev_b32 v20, 3, v1
    s_lshl_b32 s46, s46, 9
    """)
    a.vm(f"buffer_store_dwordx2 v[44:45], v20, s[{SRD_D}:{SRD_D+3}], s46 offen sc1")
    a.label("L_ref_nowx")
    a.wait_all(lgkm=False)
    a("s_barrier")
    a("v_lshlrev_b32 v21, 4, v1")
    a("s_cmp_lg_u32 s48, 0\ns_cbranch_scc1 L_ref_k16")
    a(f"""
    s_lshr_b32 s52, s{S_WAVE}, 2
    s_bfe_u32 s53, s{S_WAVE}, 0x10001
    s_and_b32 s54, s{S_WAVE}, 1
    s_lshl_b32 s55, s52, 2
    s_lshl_b32 s56, s53, 1
    s_add_u32 s55, s55, s56
    v_lshrrev_b32 v10, 5, v1
    v_bfe_u32 v11, v1, 4, 1
    v_bfe_u32 v12, v1, 2, 2
    v_lshl_or_b32 v13, v10, 2, v12
    v_add_u32 v11, s55, v11
    v_xor_b32 v11, v11, v13
    v_lshlrev_b32 v11, 5, v11
    v_lshl_add_u32 v13, v10, 3, v12
    v_lshl_add_u32 v11, v13, 8, v11
    v_and_b32 v13, 3, v1
    v_lshl_add_u32 v11, v13, 3, v11
    s_lshl_b32 s56, s54, 15
    v_add_u32 v11, s56, v11
    s_lshl_b32 s56, s49, 1
    s_add_u32 s56, s56, s52
    s_lshl_b32 s56, s56, 4
    s_lshl_b32 s57, s54, 3
    s_add_u32 s56, s56, s57
    s_lshl_b32 s56, s56, 1
    s_add_u32 s56, s56, s53
    s_lshl_b32 s56, s56, 10
    """)
    toks = []
    for s in range(8):
        a.ds(f"ds_read_b64_tr_b16 v[{24+4*s}:{25+4*s}], v11 offset:{s*4096}")
        toks.append(a.ds(f"ds_read_b64_tr_b16 v[{26+4*s}:{27+4*s}], v11 offset:{s*4096+1024}"))
        if s == 6:
            a.wait(toks[0])
    for s in range(8):
        a.wait(toks[s])
        a.vm(f"buffer_store_dwordx4 v[{24+4*s}:{27+4*s}], v21, s[{SRD_B}:{SRD_B+3}], s56 offen sc1")
        if s < 7:
            a("s_add_u32 s56, s56, 2048")
    a("s_endpgm")
    a.label("L_ref_k16")
    a.n["lgkm"] = a.done["lgkm"] = 0
    a(f"""
    s_lshr_b32 s52, s{S_WAVE}, 2
    s_and_b32 s53, s{S_WAVE}, 3
    s_lshl_b32 s55, s52, 2
    s_add_u32 s55, s55, s53
    """)
    tr_addr_16(a, 11, 55, 0)
    a(f"""
    s_lshl_b32 s56, s49, 1
    s_add_u32 s56, s56, s52
    s_lshl_b32 s56, s56, 5
    s_add_u32 s56, s56, s53
    s_lshl_b32 s56, s56, 10
    """)
    toks = []
    for s in range(8):
        a.ds(f"ds_read_b64_tr_b16 v[{24+4*s}:{25+4*s}], v11 offset:{s*8192}")
        toks.append(a.ds(f"ds_read_b64_tr_b16 v[{26+4*s}:{27+4*s}], v11 offset:{s*8192+1024}"))
        if s == 6:
            a.wait(toks[0])
    for s in range(8):
        a.wait(toks[s])
        a.vm(f"buffer_store_dwordx4 v[{24+4*s}:{27+4*s}], v21, s[{SRD_B}:{SRD_B+3}], s56 offen sc1")
        if s < 7:
            a("s_add_u32 s56, s56, 4096")
    a("s_endpgm")

def entry(a):
    a(f"""
    s_load_dwordx16 s[4:19], s[0:1], 0
    s_load_dwordx2 s[20:21], s[0:1], 80
    v_and_b32 v1, 63, v0
    v_lshrrev_b32 v2, 6, v0
    s_nop 0
    v_readfirstlane_b32 s{S_WAVE}, v2
    s_waitcnt lgkmcnt(0)
    """)
    a.stamp(0)

def prep_kernel(name):
    a = Asm()
    a.raw(f".globl {name}\n.p2align 8\n.type {name},@function\n{name}:")
    a(f"""
    s_cmp_lt_u32 s2, {N_SORT}
    s_cbranch_scc1 L_prep_sort
    s_cmp_lt_u32 s2, {N_SORT + N_REF}
    s_cbranch_scc1 L_prep_ref
    s_cmp_ge_u32 s2, {PREP_GRID}
    s_cbranch_scc1 L_prep_exit
    """)
    entry(a)
    (gemm_role2 if os.environ.get('G2', '0') == '1' else gemm_role)(a)
    a.label("L_prep_sort")
    a.n = {"vm": 0, "lgkm": 0}; a.done = {"vm": 0, "lgkm": 0}
    entry(a)
    sort_role(a)
    a.label("L_prep_ref")
    a.n = {"vm": 0, "lgkm": 0}; a.done = {"vm": 0, "lgkm": 0}
    entry(a)
    ref_role(a)
    a.label("L_prep_exit")
    a("s_endpgm")
    return a.text()
```

```python
from asmlib import *
from asmlib import STAMP
from layout import *
import os

N_SORT, N_REF, N_GEMM = 50, 6, 200
PREP_LDS = 163840 if os.environ.get('G2', '0') == '1' else 131072
PREP_GRID = N_SORT + N_REF + N_GEMM

S_H, S_POS, S_EA, S_SRC, S_DST, S_WE, S_WX, S_WH, S_WS = 4, 6, 8, 10, 12, 14, 16, 18, 20
S_WAVE = 22
SRD_A, SRD_B, SRD_C, SRD_D, SRD_E = 24, 28, 32, 36, 40

def w_slice_dma(a, srd, s_ch):
    a(f"""
    v_lshrrev_b32 v2, 4, v1
    v_bfe_u32 v3, v1, 1, 3
    v_xor_b32 v3, v3, v2
    v_lshlrev_b32 v3, 5, v3
    v_lshl_add_u32 v3, v2, 9, v3
    v_and_b32 v4, 1, v1
    v_lshl_add_u32 v3, v4, 4, v3
    v_xor_b32 v4, 0x80, v3
    """)
    KS = os.environ.get('KS', '0') == '1'
    if KS:
        a(f"""
        s_bfe_u32 s45, s{S_WAVE}, 0x10001
        s_lshl_b32 s45, s45, 7
        v_xor_b32 v3, s45, v3
        s_lshl_b32 s44, s{S_WAVE}, 11
        s_lshl_b32 s45, s{s_ch}, 8
        s_add_u32 s44, s44, s45
        s_lshl_b32 s45, s{S_WAVE}, 10
        """)
    else:
        a(f"""
        s_lshl_b32 s44, s{S_WAVE}, 14
        s_lshl_b32 s45, s{s_ch}, 8
        s_add_u32 s44, s44, s45
        s_lshl_b32 s45, s{S_WAVE}, 13
        """)
    toks = []
    for u in range(8):
        z = 0 if KS else (u >> 1) & 1
        a(f"s_add_u32 m0, s45, {u*(8192 if KS else 1024)}")
        if u:
            a(f"s_add_u32 s44, s44, {16384 if KS else 2048}")
        else:
            a("s_nop 0")
        if not os.environ.get('NOW'):
            toks.append(a.vm(f"buffer_load_dwordx4 v{3+z}, s[{srd}:{srd+3}], s44 offen lds"))
    return toks

def tr_addr_16(a, dst, seg_s, seg_add):
    a(f"""
    v_lshrrev_b32 v10, 4, v1
    v_bfe_u32 v11, v1, 2, 2
    v_and_b32 v12, 1, v10
    v_lshl_or_b32 v12, v12, 2, v11
    s_add_u32 s46, s{seg_s}, {seg_add}
    v_xor_b32 v12, s46, v12
    v_lshlrev_b32 v12, 5, v12
    v_lshl_add_u32 v13, v10, 3, v11
    v_lshl_add_u32 v12, v13, 8, v12
    v_and_b32 v13, 3, v1
    v_lshl_add_u32 v{dst}, v13, 3, v12
    """)

def gemm_role(a):
    a.comment("---- B' = -log2e * (h @ W2): 100 rows x 128 columns per workgroup")
    a(f"""
    s_sub_u32 s3, s2, {N_SORT + N_REF}
    s_lshr_b32 s48, s3, 4
    s_lshl_b32 s48, s48, 3
    s_and_b32 s49, s3, 7
    s_add_u32 s48, s48, s49
    s_bfe_u32 s49, s3, 0x10003
    s_sub_u32 s50, s3, 192
    s_and_b32 s51, s50, 3
    s_add_u32 s51, s51, 96
    s_lshr_b32 s50, s50, 2
    s_cmp_ge_u32 s3, 192
    s_cselect_b32 s48, s51, s48
    s_cselect_b32 s49, s50, s49
    s_mul_i32 s50, s48, {100*512}
    """) if os.environ.get('PAIR', '1') == '1' else a(f"""
    s_sub_u32 s3, s2, {N_SORT + N_REF}
    s_lshr_b32 s48, s3, 1
    s_and_b32 s49, s3, 1
    s_mul_i32 s50, s48, {100*512}
    """)
    a.srd(SRD_A, S_WE, 256*512, 256*512)
    a.srd(SRD_B, S_H, 0, N*512)
    a(f"s_add_u32 s51, s50, {WS_BT}")
    a.srd(SRD_C, S_WS, "s51", 100*512)
    if os.environ.get('HFIRST', '1') == '1':
        a(f"""
        v_lshrrev_b32 v5, 5, v1
        s_lshl_b32 s46, s{S_WAVE}, 1
        v_add_u32 v6, s46, v5
        v_and_b32 v7, 31, v1
        v_xor_b32 v6, v6, v7
        v_lshlrev_b32 v6, 4, v6
        v_lshl_add_u32 v6, v5, 9, v6
        s_lshl_b32 s46, s{S_WAVE}, 10
        s_add_u32 s47, s50, s46
        s_add_u32 s46, s46, 65536
        """)
        for u in range(7):
            a(f"s_add_u32 m0, s46, {u*8192}")
            if u:
                a(f"s_add_u32 s47, s47, 8192")
            else:
                a("s_nop 0")
            if not os.environ.get('NOH'):
                a.vm(f"buffer_load_dwordx4 v6, s[{SRD_B}:{SRD_B+3}], s47 offen lds" + (" nt" if os.environ.get('HNT') else ""))
        tw = w_slice_dma(a, SRD_A, 49)
    else:
        w_slice_dma(a, SRD_A, 49)
        a(f"""
        v_lshrrev_b32 v5, 5, v1
        s_lshl_b32 s46, s{S_WAVE}, 1
        v_add_u32 v6, s46, v5
        v_and_b32 v7, 31, v1
        v_xor_b32 v6, v6, v7
        v_lshlrev_b32 v6, 4, v6
        v_lshl_add_u32 v6, v5, 9, v6
        s_lshl_b32 s46, s{S_WAVE}, 10
        s_add_u32 s47, s50, s46
        s_add_u32 s46, s46, 65536
        """)
        for u in range(7):
            a(f"s_add_u32 m0, s46, {u*8192}")
            if u:
                a(f"s_add_u32 s47, s47, 8192")
            else:
                a("s_nop 0")
            if not os.environ.get('NOH'):
                a.vm(f"buffer_load_dwordx4 v6, s[{SRD_B}:{SRD_B+3}], s47 offen lds" + (" nt" if os.environ.get('HNT') else ""))
    a.stamp(3)
    a(f"""
    s_and_b32 s52, s{S_WAVE}, 3
    s_lshr_b32 s53, s{S_WAVE}, 2
    s_lshl_b32 s54, s52, 1
    """)
    VA0, VA1, VB = 14, 15, 16
    tr_addr_16(a, VA0, 54, 0)
    tr_addr_16(a, VA1, 54, 1)
    a(f"""
    v_and_b32 v10, 15, v1
    v_lshrrev_b32 v11, 4, v1
    v_xor_b32 v11, v11, v10
    s_lshl_b32 s46, s53, 15
    s_add_u32 s46, s46, 65536
    v_lshl_add_u32 v12, v10, 9, s46
    """)
    for k in range(4):
        a(f"v_xor_b32 v13, {4*k}, v11\nv_lshl_add_u32 v{VB+k}, v13, 4, v12")
    VO = 20
    a(f"""
    v_lshrrev_b32 v11, 4, v1
    v_and_b32 v13, 1, v11
    v_lshlrev_b32 v13, 5, v13
    v_lshrrev_b32 v11, 1, v11
    v_lshl_add_u32 v13, v11, 4, v13
    v_lshl_add_u32 v13, v10, 9, v13
    s_lshl_b32 s46, s49, 8
    s_lshl_b32 s47, s52, 6
    s_add_u32 s46, s46, s47
    v_add_u32 v{VO}, s46, v13
    s_lshl_b32 s55, s53, 15
    """)
    KS = os.environ.get('KS', '0') == '1' and os.environ.get('HFIRST', '1') == '1'
    if KS:
        a.wait(tw[3])
    else:
        a.wait_all(lgkm=False)
    a("s_barrier")
    a.stamp(1)
    ACC = 24
    BUF = [56, 80]
    def issue(s):
        b = BUF[s & 1]
        for mi, va in enumerate((VA0, VA1)):
            for t in range(2):
                a.ds(f"ds_read_b64_tr_b16 v[{b+4*mi+2*t}:{b+4*mi+2*t+1}], v{va} offset:{s*8192+t*1024}")
        tok = None
        for nbi in range(4):
            tok = a.ds(f"ds_read_b128 v[{b+8+4*nbi}:{b+8+4*nbi+3}], v{VB+(s&3)} offset:{nbi*8192+(s>>2)*256}")
        return tok
    tok = issue(0)
    for s in range(8):
        a.wait(tok)
        if KS and s == 3:
            a.wait(tw[7])
            a("s_barrier")
        if s < 7:
            tok = issue(s + 1)
        b = BUF[s & 1]
        for nbi in range(4):
            for mi in range(2):
                d = ACC + (mi*4 + nbi)*4
                c = "0" if s == 0 else f"v[{d}:{d+3}]"
                a(f"v_mfma_f32_16x16x32_bf16 v[{d}:{d+3}], v[{b+4*mi}:{b+4*mi+3}], v[{b+8+4*nbi}:{b+8+4*nbi+3}], {c}")
    a.stamp(4)
    a(f"s_mov_b32 s46, {hex(NEG_LOG2E)}\ns_mov_b32 s47, s46\ns_nop 7")
    for nbi in range(4):
        for mi in range(2):
            d = ACC + (mi*4 + nbi)*4
            for p in range(2):
                a(f"v_pk_mul_f32 v[{d+2*p}:{d+2*p+1}], v[{d+2*p}:{d+2*p+1}], s[46:47]")
        T = 56 + 4*nbi
        d0, d1 = ACC + nbi*4, ACC + (4 + nbi)*4
        a(f"""
        v_cvt_pk_bf16_f32 v{T}, v{d0}, v{d0+1}
        v_cvt_pk_bf16_f32 v{T+1}, v{d0+2}, v{d0+3}
        v_cvt_pk_bf16_f32 v{T+2}, v{d1}, v{d1+1}
        v_cvt_pk_bf16_f32 v{T+3}, v{d1+2}, v{d1+3}
        s_nop 1
        v_permlane16_swap_b32 v{T}, v{T+2}
        v_permlane16_swap_b32 v{T+1}, v{T+3}
        """)
        a.vm(f"buffer_store_dwordx4 v[{T}:{T+3}], v{VO}, s[{SRD_C}:{SRD_C+3}], s55 offen sc1")
        if nbi < 3:
            a("s_add_u32 s55, s55, 8192")
    if STAMP[0]:
        a("s_waitcnt vmcnt(0)")
    a.stamp(2)
    a.stamp_flush(S_WS, 0x800000, 8, S_WAVE, 120)
    a("s_endpgm")

def gemm_role2(a):
    a.comment("---- B' = -log2e * (h @ W2): 50 rows x 256 columns per workgroup, two K halves")
    HT = 131072
    a(f"""
    s_sub_u32 s3, s2, {N_SORT + N_REF}
    s_mul_i32 s50, s3, {50*512}
    """)
    a.srd(SRD_A, S_WE, 256*512, 256*512)
    a.srd(SRD_B, S_H, 0, N*512)
    a(f"s_add_u32 s51, s50, {WS_BT}")
    a.srd(SRD_C, S_WS, "s51", 50*512)
    a(f"""
    v_lshrrev_b32 v5, 5, v1
    s_lshl_b32 s46, s{S_WAVE}, 1
    v_add_u32 v6, s46, v5
    v_and_b32 v7, 31, v1
    v_xor_b32 v6, v6, v7
    v_lshlrev_b32 v6, 4, v6
    v_lshl_add_u32 v6, v5, 9, v6
    s_lshl_b32 s46, s{S_WAVE}, 10
    s_add_u32 s47, s50, s46
    s_add_u32 s45, s46, {HT}
    """)
    for u in range(3):
        a(f"s_add_u32 m0, s45, {u*8192}")
        a("s_add_u32 s47, s47, 8192" if u else "s_nop 0")
        a.vm(f"buffer_load_dwordx4 v6, s[{SRD_B}:{SRD_B+3}], s47 offen lds")
    a(f"s_cmp_lg_u32 s{S_WAVE}, 0\ns_cbranch_scc1 L_g2_noh")
    a(f"s_add_u32 m0, s45, {3*8192}\ns_add_u32 s47, s47, 8192")
    a(f"buffer_load_dwordx4 v6, s[{SRD_B}:{SRD_B+3}], s47 offen lds")
    a.label("L_g2_noh")
    a(f"""
    s_and_b32 s44, s{S_WAVE}, 1
    s_lshl_b32 s44, s44, 1
    s_bfe_u32 s47, s{S_WAVE}, 0x10002
    s_lshl_b32 s47, s47, 2
    s_or_b32 s44, s44, s47
    v_or_b32 v3, s44, v5
    v_bfe_u32 v4, v1, 1, 4
    v_xor_b32 v3, v3, v4
    v_lshlrev_b32 v3, 5, v3
    v_lshl_add_u32 v3, v5, 9, v3
    v_and_b32 v4, 1, v1
    v_lshl_add_u32 v3, v4, 4, v3
    s_mov_b32 s44, s46
    """)
    tw = []
    for u in range(16):
        a(f"s_add_u32 m0, s46, {u*8192}")
        a("s_add_u32 s44, s44, 8192" if u else "s_nop 0")
        tw.append(a.vm(f"buffer_load_dwordx4 v3, s[{SRD_A}:{SRD_A+3}], s44 offen lds"))
    a.stamp(3)
    a(f"s_lshl_b32 s54, s{S_WAVE}, 1")
    VA0, VA1, VB = 14, 15, 16
    for dst, add in ((VA0, 0), (VA1, 1)):
        a(f"""
        v_lshrrev_b32 v10, 4, v1
        v_bfe_u32 v11, v1, 2, 2
        v_and_b32 v12, 1, v10
        v_lshl_or_b32 v12, v12, 2, v11
        s_add_u32 s46, s54, {add}
        v_xor_b32 v12, s46, v12
        v_lshlrev_b32 v12, 5, v12
        v_lshl_add_u32 v13, v10, 3, v11
        v_lshl_add_u32 v12, v13, 9, v12
        v_and_b32 v13, 3, v1
        v_lshl_add_u32 v{dst}, v13, 3, v12
        v_add_u32 v{dst+8}, 0x10000, v{dst}
        """)
    a(f"""
    v_and_b32 v10, 15, v1
    v_lshrrev_b32 v11, 4, v1
    v_xor_b32 v11, v11, v10
    v_lshlrev_b32 v12, 9, v10
    v_add_u32 v12, {HT}, v12
    """)
    for k in range(4):
        a(f"v_xor_b32 v13, {4*k}, v11\nv_lshl_add_u32 v{VB+k}, v13, 4, v12")
    VO = 20
    a(f"""
    v_lshrrev_b32 v11, 4, v1
    v_and_b32 v13, 1, v11
    v_lshlrev_b32 v13, 5, v13
    v_lshrrev_b32 v11, 1, v11
    v_lshl_add_u32 v13, v11, 4, v13
    v_lshl_add_u32 v13, v10, 9, v13
    s_lshl_b32 s46, s{S_WAVE}, 6
    v_add_u32 v{VO}, s46, v13
    s_mov_b32 s55, 0
    """)
    ACC = 24
    BUF = [56, 80]
    def issue(s):
        b = BUF[s & 1]
        for mi, va in enumerate((VA0, VA1)):
            for t in range(2):
                reg = va if s < 4 else va + 8
                a.ds(f"ds_read_b64_tr_b16 v[{b+4*mi+2*t}:{b+4*mi+2*t+1}], v{reg} offset:{(s & 3)*16384 + t*2048}")
        tok = None
        for nbi in range(4):
            tok = a.ds(f"ds_read_b128 v[{b+8+4*nbi}:{b+8+4*nbi+3}], v{VB+(s&3)} offset:{nbi*8192+(s>>2)*256}")
        return tok
    a.wait(tw[7])
    a("s_barrier")
    a.stamp(1)
    tok = issue(0)
    for s in range(8):
        a.wait(tok)
        if s == 3:
            a.wait(tw[15])
            a("s_barrier")
        if s < 7:
            tok = issue(s + 1)
        b = BUF[s & 1]
        for nbi in range(4):
            for mi in range(2):
                d = ACC + (mi*4 + nbi)*4
                c = "0" if s == 0 else f"v[{d}:{d+3}]"
                a(f"v_mfma_f32_16x16x32_bf16 v[{d}:{d+3}], v[{b+4*mi}:{b+4*mi+3}], v[{b+8+4*nbi}:{b+8+4*nbi+3}], {c}")
    a.stamp(4)
    a(f"s_mov_b32 s46, {hex(NEG_LOG2E)}\ns_mov_b32 s47, s46\ns_nop 7")
    for nbi in range(4):
        for mi in range(2):
            d = ACC + (mi*4 + nbi)*4
            for p in range(2):
                a(f"v_pk_mul_f32 v[{d+2*p}:{d+2*p+1}], v[{d+2*p}:{d+2*p+1}], s[46:47]")
        T = 56 + 4*nbi
        d0, d1 = ACC + nbi*4, ACC + (4 + nbi)*4
        a(f"""
        v_cvt_pk_bf16_f32 v{T}, v{d0}, v{d0+1}
        v_cvt_pk_bf16_f32 v{T+1}, v{d0+2}, v{d0+3}
        v_cvt_pk_bf16_f32 v{T+2}, v{d1}, v{d1+1}
        v_cvt_pk_bf16_f32 v{T+3}, v{d1+2}, v{d1+3}
        s_nop 1
        v_permlane16_swap_b32 v{T}, v{T+2}
        v_permlane16_swap_b32 v{T+1}, v{T+3}
        """)
        a.vm(f"buffer_store_dwordx4 v[{T}:{T+3}], v{VO}, s[{SRD_C}:{SRD_C+3}], s55 offen sc1")
        if nbi < 3:
            a("s_add_u32 s55, s55, 8192")
    if STAMP[0]:
        a("s_waitcnt vmcnt(0)")
    a.stamp(2)
    a.stamp_flush(S_WS, 0x800000, 8, S_WAVE, 120)
    a("s_endpgm")

def sort_role(a):
    a.comment("---- counting sort of one 3200-edge chunk by destination bucket")
    CNT, START, R4, R8 = 0, 1024, 2048, 16384
    NR = 7
    a(f"""
    s_mul_i32 s48, s2, {CH*4}
    s_mul_i32 s49, s2, {CH*8}
    """)
    a.srd(SRD_A, S_DST, "s48", CH*4)
    a.srd(SRD_B, S_SRC, "s48", CH*4)
    a.srd(SRD_C, S_EA, "s49", CH*8)
    a("v_lshlrev_b32 v2, 2, v0\nv_lshlrev_b32 v3, 3, v0")
    VD, VS, VE = 8, 16, 24
    tk = []
    for r in range(NR):
        a(f"s_movk_i32 s46, {r*2048}\ns_movk_i32 s47, {r*4096}")
        a.vm(f"buffer_load_dword v{VD+r}, v2, s[{SRD_A}:{SRD_A+3}], s46 offen")
        a.vm(f"buffer_load_dword v{VS+r}, v2, s[{SRD_B}:{SRD_B+3}], s46 offen")
        tk.append(a.vm(f"buffer_load_dwordx2 v[{VE+2*r}:{VE+2*r+1}], v3, s[{SRD_C}:{SRD_C+3}], s47 offen"))
    a(f"s_mul_i32 s50, s2, {200*6}\ns_mul_i32 s51, s2, {200*8}\ns_add_u32 s51, s51, {WS_POSP}")
    a.srd(SRD_D, S_POS, "s50", 200*6)
    a.srd(SRD_E, S_WS, "s51", 200*8)
    a("v_mul_u32_u24 v4, 6, v0")
    for c in range(3):
        tp = a.vm(f"buffer_load_ushort v{40+c}, v4, s[{SRD_D}:{SRD_D+3}], 0 offen offset:{2*c}")
    a(f"""
    v_mov_b32 v5, 0
    v_cmp_gt_u32 vcc, 256, v0
    s_and_saveexec_b64 s[52:53], vcc
    s_cbranch_execz L_sort_zero_done
    """)
    a.ds(f"ds_write_b32 v2, v5 offset:{CNT}")
    a.label("L_sort_zero_done")
    a("s_mov_b64 exec, s[52:53]")
    a.wait_all(vm=False)
    a("s_barrier")
    a.wait(tk[0])
    a.stamp(1)
    VB, VK = 44, 52
    a("s_mov_b32 s46, 52429\nv_mov_b32 v6, 1")
    for r in range(NR):
        if r == NR - 1:
            a(f"s_cmp_ge_u32 s{S_WAVE}, 2\ns_cbranch_scc1 L_sort_r6a")
        a.wait(tk[r])
        a(f"""
        v_mul_u32_u24 v5, s46, v{VD+r}
        v_lshrrev_b32 v5, 21, v5
        v_mul_u32_u24 v7, 40, v5
        v_sub_u32 v7, v{VD+r}, v7
        v_lshl_add_u32 v{VS+r}, v{VS+r}, 9, v7
        v_lshlrev_b32 v{VB+r}, 2, v5
        """)
        a.ds(f"ds_add_rtn_u32 v{VK+r}, v{VB+r}, v6 offset:{CNT}")
    a.label("L_sort_r6a")
    a.stamp(3)
    a.wait(tp)
    a(f"""
    v_lshl_or_b32 v40, v41, 16, v40
    v_mov_b32 v41, v42
    """)
    a.vm(f"buffer_store_dwordx2 v[40:41], v3, s[{SRD_E}:{SRD_E+3}], 0 offen sc1")
    a.wait_all(vm=False)
    a("s_barrier")
    a(f"s_cmp_lg_u32 s{S_WAVE}, 0\ns_cbranch_scc1 L_sort_scan_done")
    a("v_lshlrev_b32 v4, 4, v1")
    a.ds(f"ds_read_b128 v[60:63], v4 offset:{CNT}")
    a.wait_all(vm=False)
    a("""
    v_add_u32 v65, v60, v61
    v_add_u32 v66, v65, v62
    v_add_u32 v67, v66, v63
    v_mov_b32 v68, v67
    s_nop 1
    v_add_u32_dpp v68, v68, v68 row_shr:1 row_mask:0xf bank_mask:0xf bound_ctrl:0
    s_nop 1
    v_add_u32_dpp v68, v68, v68 row_shr:2 row_mask:0xf bank_mask:0xf bound_ctrl:0
    s_nop 1
    v_add_u32_dpp v68, v68, v68 row_shr:4 row_mask:0xf bank_mask:0xf bound_ctrl:0
    s_nop 1
    v_add_u32_dpp v68, v68, v68 row_shr:8 row_mask:0xf bank_mask:0xf bound_ctrl:0
    s_nop 1
    v_add_u32_dpp v68, v68, v68 row_bcast:15 row_mask:0xa bank_mask:0xf
    s_nop 1
    v_add_u32_dpp v68, v68, v68 row_bcast:31 row_mask:0xc bank_mask:0xf
    v_sub_u32 v72, v68, v67
    v_add_u32 v73, v72, v60
    v_add_u32 v74, v72, v65
    v_add_u32 v75, v72, v66
    """)
    a.ds(f"ds_write_b128 v4, v[72:75] offset:{START}")
    a(f"s_lshl_b32 s50, s2, 2\ns_add_u32 s50, s50, {WS_OFFS}")
    a.srd(SRD_D, S_WS, "s50", NB*256 - 200)
    a("v_lshlrev_b32 v5, 10, v1")
    for i in range(4):
        a(f"v_lshl_or_b32 v{76+i}, v{60+i}, 16, v{72+i}")
        a.vm(f"buffer_store_dword v{76+i}, v5, s[{SRD_D}:{SRD_D+3}], 0 offen offset:{i*256} sc1")
    a.wait_all(vm=False)
    a.label("L_sort_scan_done")
    a("s_barrier")
    a.stamp(4)
    VP = 60
    toks = []
    for r in range(NR):
        if r == NR - 1:
            a(f"s_cmp_ge_u32 s{S_WAVE}, 2\ns_cbranch_scc1 L_sort_r6b")
        toks.append(a.ds(f"ds_read_b32 v{VP+r}, v{VB+r} offset:{START}"))
    a.label("L_sort_r6b")
    a.wait_all(vm=False)
    for r in range(NR):
        if r == NR - 1:
            a(f"s_cmp_ge_u32 s{S_WAVE}, 2\ns_cbranch_scc1 L_sort_r6c")
        a(f"""
        v_add_u32 v5, v{VP+r}, v{VK+r}
        v_lshlrev_b32 v7, 3, v5
        v_lshlrev_b32 v5, 2, v5
        """)
        a.ds(f"ds_write_b32 v5, v{VS+r} offset:{R4}")
        a.ds(f"ds_write_b64 v7, v[{VE+2*r}:{VE+2*r+1}] offset:{R8}")
    a.label("L_sort_r6c")
    a.wait_all(vm=False)
    a("s_barrier")
    a.stamp(5)
    a(f"s_add_u32 s50, s48, {WS_REC4}\ns_add_u32 s51, s49, {WS_REC8}")
    a.srd(SRD_A, S_WS, "s50", CH*4)
    a.srd(SRD_B, S_WS, "s51", CH*8)
    a("v_lshlrev_b32 v4, 4, v0")
    outs = [(R4, SRD_A, 0), (R4, SRD_A, 8192), (R8, SRD_B, 0), (R8, SRD_B, 8192), (R8, SRD_B, 16384), (R8, SRD_B, 24576)]
    toks = [a.ds(f"ds_read_b128 v[{80+4*i}:{83+4*i}], v4 offset:{base+off}") for i, (base, srd, off) in enumerate(outs)]
    for i, (base, srd, off) in enumerate(outs):
        a(f"s_movk_i32 s46, {off}")
        a.wait(toks[i])
        a.vm(f"buffer_store_dwordx4 v[{80+4*i}:{83+4*i}], v4, s[{srd}:{srd+3}], s46 offen sc1")
    if STAMP[0]:
        a("s_waitcnt vmcnt(0)")
    a.stamp(2)
    a.stamp_flush(S_WS, 0x800000, 8, S_WAVE, 120)
    a("s_endpgm")

def ref_role(a):
    a.comment("---- weight re-layout into MFMA fragment order, extras-weight split")
    a(f"""
    s_sub_u32 s3, s2, {N_SORT}
    s_lshr_b32 s48, s3, 1
    s_and_b32 s49, s3, 1
    s_cmp_eq_u32 s48, 0
    s_cselect_b32 s50, s{S_WE}, s{S_WH}
    s_cselect_b32 s51, s{S_WE+1}, s{S_WH+1}
    s_cmp_eq_u32 s48, 2
    s_cselect_b32 s52, {256*512}, 0
    """)
    a.srd(SRD_A, 50, "s52", 256*512)
    w_slice_dma(a, SRD_A, 49)
    a(f"""
    s_lshl_b32 s52, s48, 17
    s_add_u32 s52, s52, {WS_W1F}
    """)
    a.srd(SRD_B, S_WS, "s52", 131072)
    a(f"""
    s_cmp_lg_u32 s48, 0
    s_cbranch_scc1 L_ref_nowx
    s_cmp_ge_u32 s{S_WAVE}, 4
    s_cbranch_scc1 L_ref_nowx
    """)
    a.srd(SRD_C, S_WE, 512*512, 5*512)
    a.srd(SRD_D, S_WS, WS_WXF, 4096)
    a(f"""
    s_lshl_b32 s46, s49, 2
    s_add_u32 s46, s46, s{S_WAVE}
    v_and_b32 v20, 31, v1
    s_lshl_b32 s47, s46, 6
    v_lshl_add_u32 v20, v20, 1, s47
    """)
    for k in range(5):
        t = a.vm(f"buffer_load_ushort v{22+k}, v20, s[{SRD_C}:{SRD_C+3}], 0 offen offset:{k*512}")
    a.wait(t)
    a(f"s_mov_b32 s47, {hex(NEG_LOG2E)}")
    for k in range(5):
        a(f"""
        v_lshlrev_b32 v{22+k}, 16, v{22+k}
        v_mul_f32 v{22+k}, s47, v{22+k}
        v_cvt_pk_bf16_f32 v{28+k}, v{22+k}, v{22+k}
        v_and_b32 v27, 0xffff0000, v{28+k}
        v_sub_f32 v27, v{22+k}, v27
        v_cvt_pk_bf16_f32 v{34+k}, v27, v27
        """)
    a("""
    s_mov_b32 s47, 0xffff
    v_and_b32 v40, s47, v29
    v_lshl_or_b32 v40, v30, 16, v40
    v_and_b32 v41, s47, v31
    v_lshl_or_b32 v41, v32, 16, v41
    v_and_b32 v42, s47, v28
    v_lshl_or_b32 v42, v34, 16, v42
    v_and_b32 v43, s47, v35
    v_lshl_or_b32 v43, v36, 16, v43
    v_cmp_gt_u32 vcc, 32, v1
    s_nop 1
    v_cndmask_b32 v44, v42, v40, vcc
    v_cndmask_b32 v45, v43, v41, vcc
    v_lshlrev_b32 v20, 3, v1
    s_lshl_b32 s46, s46, 9
    """)
    a.vm(f"buffer_store_dwordx2 v[44:45], v20, s[{SRD_D}:{SRD_D+3}], s46 offen sc1")
    a.label("L_ref_nowx")
    a.wait_all(lgkm=False)
    a("s_barrier")
    a("v_lshlrev_b32 v21, 4, v1")
    a("s_cmp_lg_u32 s48, 0\ns_cbranch_scc1 L_ref_k16")
    a(f"""
    s_lshr_b32 s52, s{S_WAVE}, 2
    s_bfe_u32 s53, s{S_WAVE}, 0x10001
    s_and_b32 s54, s{S_WAVE}, 1
    s_lshl_b32 s55, s52, 2
    s_lshl_b32 s56, s53, 1
    s_add_u32 s55, s55, s56
    v_lshrrev_b32 v10, 5, v1
    v_bfe_u32 v11, v1, 4, 1
    v_bfe_u32 v12, v1, 2, 2
    v_lshl_or_b32 v13, v10, 2, v12
    v_add_u32 v11, s55, v11
    v_xor_b32 v11, v11, v13
    v_lshlrev_b32 v11, 5, v11
    v_lshl_add_u32 v13, v10, 3, v12
    v_lshl_add_u32 v11, v13, 8, v11
    v_and_b32 v13, 3, v1
    v_lshl_add_u32 v11, v13, 3, v11
    s_lshl_b32 s56, s54, 15
    v_add_u32 v11, s56, v11
    s_lshl_b32 s56, s49, 1
    s_add_u32 s56, s56, s52
    s_lshl_b32 s56, s56, 4
    s_lshl_b32 s57, s54, 3
    s_add_u32 s56, s56, s57
    s_lshl_b32 s56, s56, 1
    s_add_u32 s56, s56, s53
    s_lshl_b32 s56, s56, 10
    """)
    toks = []
    for s in range(8):
        a.ds(f"ds_read_b64_tr_b16 v[{24+4*s}:{25+4*s}], v11 offset:{s*4096}")
        toks.append(a.ds(f"ds_read_b64_tr_b16 v[{26+4*s}:{27+4*s}], v11 offset:{s*4096+1024}"))
        if s == 6:
            a.wait(toks[0])
    for s in range(8):
        a.wait(toks[s])
        a.vm(f"buffer_store_dwordx4 v[{24+4*s}:{27+4*s}], v21, s[{SRD_B}:{SRD_B+3}], s56 offen sc1")
        if s < 7:
            a("s_add_u32 s56, s56, 2048")
    a("s_endpgm")
    a.label("L_ref_k16")
    a.n["lgkm"] = a.done["lgkm"] = 0
    a(f"""
    s_lshr_b32 s52, s{S_WAVE}, 2
    s_and_b32 s53, s{S_WAVE}, 3
    s_lshl_b32 s55, s52, 2
    s_add_u32 s55, s55, s53
    """)
    tr_addr_16(a, 11, 55, 0)
    a(f"""
    s_lshl_b32 s56, s49, 1
    s_add_u32 s56, s56, s52
    s_lshl_b32 s56, s56, 5
    s_add_u32 s56, s56, s53
    s_lshl_b32 s56, s56, 10
    """)
    toks = []
    for s in range(8):
        a.ds(f"ds_read_b64_tr_b16 v[{24+4*s}:{25+4*s}], v11 offset:{s*8192}")
        toks.append(a.ds(f"ds_read_b64_tr_b16 v[{26+4*s}:{27+4*s}], v11 offset:{s*8192+1024}"))
        if s == 6:
            a.wait(toks[0])
    for s in range(8):
        a.wait(toks[s])
        a.vm(f"buffer_store_dwordx4 v[{24+4*s}:{27+4*s}], v21, s[{SRD_B}:{SRD_B+3}], s56 offen sc1")
        if s < 7:
            a("s_add_u32 s56, s56, 4096")
    a("s_endpgm")

def entry(a):
    a(f"""
    s_load_dwordx16 s[4:19], s[0:1], 0
    s_load_dwordx2 s[20:21], s[0:1], 80
    v_and_b32 v1, 63, v0
    v_lshrrev_b32 v2, 6, v0
    s_nop 0
    v_readfirstlane_b32 s{S_WAVE}, v2
    s_waitcnt lgkmcnt(0)
    """)
    a.stamp(0)

def prep_kernel(name):
    a = Asm()
    a.raw(f".globl {name}\n.p2align 8\n.type {name},@function\n{name}:")
    a(f"""
    s_cmp_lt_u32 s2, {N_SORT}
    s_cbranch_scc1 L_prep_sort
    s_cmp_lt_u32 s2, {N_SORT + N_REF}
    s_cbranch_scc1 L_prep_ref
    s_cmp_ge_u32 s2, {PREP_GRID}
    s_cbranch_scc1 L_prep_exit
    """)
    entry(a)
    (gemm_role2 if os.environ.get('G2', '0') == '1' else gemm_role)(a)
    a.label("L_prep_sort")
    a.n = {"vm": 0, "lgkm": 0}; a.done = {"vm": 0, "lgkm": 0}
    entry(a)
    sort_role(a)
    a.label("L_prep_ref")
    a.n = {"vm": 0, "lgkm": 0}; a.done = {"vm": 0, "lgkm": 0}
    entry(a)
    ref_role(a)
    a.label("L_prep_exit")
    a("s_endpgm")
    return a.text()
```
